```python
import torch

def _softmax(x, axis=-1):
    return torch.softmax(x, dim=axis)

def _gelu(x):
    return torch.nn.functional.gelu(x, approximate='tanh')

def _silu(x):
    return torch.nn.functional.silu(x)

def _sigmoid(x):
    return torch.sigmoid(x)

def _layernorm(x, axis=-1, eps=1e-05):
    m = x.mean(dim=axis, keepdim=True)
    v = x.var(dim=axis, keepdim=True, unbiased=False)
    return (x - m) / torch.sqrt(v + eps)

def _scatter_add(tgt, idx, src, axis=0):
    return tgt.clone().index_add_(axis, idx, src)

def _segment_sum(src, seg, n):
    out = torch.zeros((n,) + src.shape[1:], dtype=src.dtype)
    return out.index_add_(0, seg, src)

def _pad(x, pw):
    flat = tuple((v for pair in reversed(pw) for v in pair))
    return torch.nn.functional.pad(x, flat)
kernel_name = 'standalone__video_video_swin__vision'

def setup_inputs():

    _w = lambda a: (lambda t: t.to(torch.bfloat16) if t.is_floating_point() else t)(torch.as_tensor(a))
    T = 4
    H = W = 384 // 7 * 7
    C, win = (96, 7)
    return {'x': _w((lambda *s: torch.randn(*s, dtype=torch.bfloat16) * 0.1)(1, T, H, W, C)), 'wqkv_t': _w((lambda *s: torch.randn(*s, dtype=torch.bfloat16) * 0.1)(C, 3 * C)), 'wo_t': _w((lambda *s: torch.randn(*s, dtype=torch.bfloat16) * 0.1)(C, C)), 'wqkv_s': _w((lambda *s: torch.randn(*s, dtype=torch.bfloat16) * 0.1)(C, 3 * C)), 'wo_s': _w((lambda *s: torch.randn(*s, dtype=torch.bfloat16) * 0.05)(C, C))}

def reference(x, wqkv_t, wo_t, wqkv_s, wo_s):
    B, T, H, W, C = x.shape
    win = 7
    scale = C ** (-0.5)
    h = _layernorm(x, axis=-1)
    ht = (lambda x, *d: x.permute(*d))(h, 0, 2, 3, 1, 4).reshape(B * H * W, T, C)
    qkv = ht @ wqkv_t
    q, k, v = (qkv[..., :C].clone(), qkv[..., C:2 * C].clone(), qkv[..., 2 * C:].clone())
    p = _softmax(torch.einsum('btc,bsc->bts', q, k) * scale, axis=-1)
    ot = torch.einsum('bts,bsc->btc', p, v) @ wo_t
    ot = (lambda x, *d: x.permute(*d))(ot.reshape(B, H, W, T, C), 0, 3, 1, 2, 4)
    x = x + ot
    h = _layernorm(x, axis=-1)
    nh, nw = (H // win, W // win)
    hs = h.reshape(B * T, nh, win, nw, win, C)
    hw = (lambda x, *d: x.permute(*d))(hs, 0, 1, 3, 2, 4, 5).reshape(B * T * nh * nw, win * win, C)
    qkv = hw @ wqkv_s
    q, k, v = (qkv[..., :C].clone(), qkv[..., C:2 * C].clone(), qkv[..., 2 * C:].clone())
    p = _softmax(torch.einsum('bqc,bkc->bqk', q, k) * scale, axis=-1)
    os = torch.einsum('bqk,bkc->bqc', p, v) @ wo_s
    os = (lambda x, *d: x.permute(*d))(os.reshape(B * T, nh, nw, win, win, C), 0, 1, 3, 2, 4, 5)
    os = os.reshape(B, T, H, W, C)
    return x + os
```

```python
import random

PASSES = {'big': 8, 'med': 4}
MFMA = ('big', 'med')
VALU = ('valu', 'trans', 'swap')
MEM = ('dsr', 'dsw', 'dma', 'vst', 'vld')
SCALAR = ('salu', 'wait', 'nop', 'barrier', 'branch', 'label', 'smem')


class Blk:
    def __init__(self, name, size, persistent=False, carried=False, align=None):
        self.name, self.size = name, size
        self.persistent, self.carried = persistent, carried
        self.align = align if align else (2 if size > 1 else 1)
        self.base = None

    def __getitem__(self, i):
        if isinstance(i, slice):
            a = i.start or 0
            b = self.size if i.stop is None else i.stop
            assert 0 <= a < b <= self.size, (self.name, a, b)
            return Reg(self, a, b - a)
        assert 0 <= i < self.size, (self.name, i)
        return Reg(self, i, 1)

    @property
    def all(self):
        return Reg(self, 0, self.size)

    def __repr__(self):
        return f"<{self.name}:{self.size}@{self.base}>"


class Reg:
    def __init__(self, blk, off, n):
        self.blk, self.off, self.n = blk, off, n

    def elems(self):
        return [(self.blk, self.off + i) for i in range(self.n)]

    def __getitem__(self, i):
        if isinstance(i, slice):
            a = i.start or 0
            b = self.n if i.stop is None else i.stop
            return Reg(self.blk, self.off + a, b - a)
        return Reg(self.blk, self.off + i, 1)

    def text(self):
        a = self.blk.base + self.off
        if self.n > 1:
            assert a % 2 == 0, (self.blk, self.off, self.n)
            return f"v[{a}:{a + self.n - 1}]"
        return f"v{a}"


class Ins:
    _n = 0

    def __init__(self, kind, fmt, ops, wr, rd, swr=(), srd=(), part=None, after=(), dur=None, dpp=(), srcc=None,
                 release=None, deadline=None, acc=False):
        self.kind, self.fmt, self.ops = kind, fmt, ops
        self.wr = [e for r in wr for e in r.elems()]
        self.rd = [e for r in rd for e in r.elems()]
        self.swr, self.srd = list(swr), list(srd)
        self.part = part
        self.after = list(after)
        self.dpp = [e for r in dpp for e in r.elems()]
        self.srcc = srcc
        self.acc = acc
        self.release = release
        self.deadline = deadline
        if dur is None:
            dur = {'trans': 2, 'swap': 2, 'big': 2, 'med': 2, 'vst': 6}.get(kind, 1)
        self.dur = dur
        self.id = Ins._n
        Ins._n += 1
        self.t = None

    def text(self):
        return self.fmt.format(*[o.text() if isinstance(o, Reg) else o for o in self.ops])

    def __repr__(self):
        return f"<{self.kind} {self.fmt} #{self.id}>"


class Prog:
    def __init__(self):
        self.ins = []
        self.blks = []
        self.part = None

    def v(self, name, size=1, **kw):
        b = Blk(name, size, **kw)
        self.blks.append(b)
        return b

    def add(self, kind, fmt, ops, wr=(), rd=(), **kw):
        kw.setdefault('part', self.part)
        i = Ins(kind, fmt, ops, wr, rd, **kw)
        self.ins.append(i)
        return i

    @staticmethod
    def _regs(xs):
        return [x for x in xs if isinstance(x, Reg)]

    @staticmethod
    def _sregs(xs):
        out = []
        for x in xs:
            if isinstance(x, str):
                y = x.lstrip('-')
                if y in ('vcc', 'm0', 'exec'):
                    out.append(y)
                elif y.startswith('s[') and y.endswith(']'):
                    a, b = y[2:-1].split(':')
                    out += [f"s{k}" for k in range(int(a), int(b) + 1)]
                elif y.startswith('s') and y[1:].isdigit():
                    out.append(y)
        return out

    def valu(self, op, d, *src, mods="", kind='valu', rmw=False, dpp=False, fmt=None, **kw):
        ops = [d] + list(src)
        if fmt is None:
            fmt = op + " " + ", ".join("{}" for _ in ops) + (" " + mods if mods else "")
        rd = self._regs(src) + ([d] if rmw else [])
        return self.add(kind, fmt, ops, wr=[d], rd=rd, srd=self._sregs(src), dpp=[src[0]] if dpp else [], **kw)

    def trans(self, op, d, s, **kw):
        return self.valu(op, d, s, kind='trans', **kw)

    def swap32(self, a, b, **kw):
        return self.add('swap', "v_permlane32_swap_b32 {}, {}", [a, b], wr=[a, b], rd=[a, b], dpp=[a, b], **kw)

    def swap16(self, a, b, **kw):
        return self.add('swap', "v_permlane16_swap_b32 {}, {}", [a, b], wr=[a, b], rd=[a, b], dpp=[a, b], **kw)

    def mfma(self, shape, d, a, b, c, **kw):
        op = {'big': "v_mfma_f32_32x32x16_bf16", 'med': "v_mfma_f32_16x16x32_bf16"}[shape]
        acc = isinstance(c, Reg) and c.blk is d.blk and c.off == d.off and c.n == d.n
        return self.add(shape, op + " {}, {}, {}, {}", [d, a, b, c], wr=[d], rd=self._regs([a, b, c]),
                        srcc=c if isinstance(c, Reg) else None, acc=acc, **kw)

    def smfmac(self, shape, d, a, b, idx, **kw):
        op = {'big': "v_smfmac_f32_32x32x32_bf16", 'med': "v_smfmac_f32_16x16x64_bf16"}[shape]
        return self.add(shape, op + " {}, {}, {}, {}", [d, a, b, idx], wr=[d], rd=self._regs([a, b, idx, d]),
                        srcc=d, acc=True, **kw)

    def dsr(self, d, addr, off=0, op=None, **kw):
        if op is None:
            n = d.n if isinstance(d, Reg) else 4
            op = {1: "ds_read_b32", 2: "ds_read_b64", 4: "ds_read_b128"}[n]
        assert 0 <= off < 65536
        return self.add('dsr', op + " {}, {}" + (f" offset:{off}" if off else ""), [d, addr],
                        wr=self._regs([d]), rd=[addr], **kw)

    def dsw(self, addr, s, off=0, **kw):
        op, dur = {1: ("ds_write_b32", 2), 2: ("ds_write_b64", 3), 4: ("ds_write_b128", 5)}[s.n]
        assert 0 <= off < 65536
        return self.add('dsw', op + " {}, {}" + (f" offset:{off}" if off else ""), [addr, s], rd=[addr, s], dur=dur, **kw)

    def salu(self, op, d, *src, scc_w=None, scc_r=False, **kw):
        ops = ([d] if d is not None else []) + list(src)
        fmt = op + " " + ", ".join("{}" for _ in ops)
        if scc_w is None:
            scc_w = not op.startswith(('s_mov', 's_mul', 's_cselect', 's_movk'))
        swr = self._sregs([d] if d is not None else []) + (['scc'] if scc_w else [])
        srd = self._sregs(src) + (['scc'] if scc_r or op.startswith(('s_cselect', 's_addc', 's_subb')) else [])
        return self.add('salu', fmt, ops, swr=swr, srd=srd, **kw)


def raw_latency(p, c, elems):
    if p.kind in MFMA:
        n = PASSES[p.kind] + 4
        if c.kind in MFMA and c.srcc is not None and set(elems) <= set(c.srcc.elems()):
            if c.acc and c.kind == p.kind and p.wr == c.wr:
                return 1
            return PASSES[p.kind] + 3
        return n + 1
    if p.kind in ('dsr',):
        return 34
    if p.kind == 'vld':
        return 300
    if p.kind in VALU:
        if c.kind in MFMA:
            return max(p.dur, 1) + 2
        if any(e in c.dpp for e in elems):
            return p.dur + 2
        if p.kind == 'trans' and c.kind != 'trans':
            return p.dur + 1
        return p.dur
    return 1


def build_deps(ins):
    lastw, readers = {}, {}
    preds = {i.id: {} for i in ins}
    byid = {i.id: i for i in ins}

    def edge(a, b, lat):
        if a is b:
            return
        d = preds[b.id]
        d[a.id] = max(d.get(a.id, 0), lat)

    for i in ins:
        rawby = {}
        for e in i.rd:
            if e in lastw:
                rawby.setdefault(lastw[e].id, []).append(e)
        for pid, el in rawby.items():
            edge(byid[pid], i, raw_latency(byid[pid], i, el))
        for e in i.srd:
            if e in lastw:
                p = lastw[e]
                lat = 1
                if e == 'm0' and i.kind == 'dma':
                    lat = 2
                edge(p, i, lat)
        for e in i.wr + i.swr:
            if e in lastw:
                p = lastw[e]
                lat = 1
                if p.kind in MFMA and i.kind not in MFMA:
                    lat = PASSES[p.kind] + 5
                if p.kind == 'dsr':
                    lat = 34
                edge(p, i, lat)
            for r in readers.get(e, []):
                lat = 1
                if r.kind in MFMA and r.srcc is not None and e in r.srcc.elems() and i.kind in VALU:
                    lat = PASSES[r.kind]
                if r.kind == 'vst':
                    lat = 3
                edge(r, i, lat)
        for a in i.after:
            if a.id in byid:
                edge(a, i, 1)
        for e in i.rd + i.srd:
            readers.setdefault(e, []).append(i)
        for e in i.wr + i.swr:
            lastw[e] = i
            readers[e] = []
    return preds


def schedule(ins, backbone, verbose=False, lookahead=48):
    byid = {i.id: i for i in ins}
    assert set(m.id for m in backbone) == set(i.id for i in ins if i.kind in MFMA), "backbone must list every MFMA"
    preds = build_deps(ins)
    succs = {i.id: [] for i in ins}
    for b, d in preds.items():
        for a, lat in d.items():
            succs[a].append((b, lat))
    ideal, t = {}, 0
    for m in backbone:
        ideal[m.id] = t
        t += PASSES[m.kind]
    tend = t
    dl = {}
    for i in reversed(ins):
        d = ideal[i.id] if i.kind in MFMA else tend + 40
        if i.deadline is not None:
            d = min(d, ideal[i.deadline.id] if isinstance(i.deadline, Ins) else i.deadline)
        if i.kind not in MFMA:
            for b, lat in succs[i.id]:
                d = min(d, dl[b] - max(lat, i.dur))
        dl[i.id] = d
    pos = {m.id: k for k, m in enumerate(backbone)}
    need = {}
    for i in ins:
        mx = -1
        for a in preds[i.id]:
            mx = max(mx, need[a], pos.get(a, -1))
        need[i.id] = mx
        if i.kind in MFMA:
            assert mx < pos[i.id], ("backbone order violates dependence", i, backbone[mx])
    npred = {i.id: len(preds[i.id]) for i in ins}
    est = {i.id: 0 for i in ins}
    ready = set(i.id for i in ins if npred[i.id] == 0 and i.kind not in MFMA)
    out = []
    t = 0
    pipe = 0
    k = 0
    free_scalar = False
    last_valu_end = -10
    late = 0
    stalls = []
    done = set()

    def commit(i, when):
        i.t = when
        out.append(i)
        done.add(i.id)
        ready.discard(i.id)
        for b, lat in succs[i.id]:
            est[b] = max(est[b], when + lat)
            npred[b] -= 1
            if npred[b] == 0 and byid[b].kind not in MFMA:
                ready.add(b)

    def released(i):
        if i.release is not None and i.release.id in byid and i.release.id not in done:
            return False
        return True

    while len(out) < len(ins):
        m = backbone[k] if k < len(backbone) else None
        m_ok = m is not None and npred[m.id] == 0
        m_time = max(t, pipe, est[m.id]) if m_ok else None
        if free_scalar:
            free_scalar = False
            c = [byid[x] for x in ready if byid[x].kind in SCALAR and est[x] <= t - 1 and released(byid[x])
                 and byid[x].kind != 'barrier']
            if c:
                c.sort(key=lambda i: (dl[i.id], i.id))
                commit(c[0], t - 1)
                continue
        if m_ok and m_time <= t:
            late = t - ideal[m.id]
            if pipe < t and k > 0:
                stalls.append((k, t - pipe))
            commit(m, t)
            pipe = t + PASSES[m.kind]
            t += 2
            k += 1
            free_scalar = True
            continue
        cand = []
        for x in ready:
            i = byid[x]
            if est[x] > t or not released(i):
                continue
            pen = max(0, last_valu_end + 2 - t) if i.kind in MEM else 0
            d = dl[x] + late
            if i.kind in ('dsr', 'vld') and i.release is None and d - t > lookahead:
                continue
            cand.append((i, pen, d))
        horizon = m_time if m_ok else None
        best = None
        if cand:
            def key(c):
                i, pen, d = c
                fits = horizon is None or t + pen + i.dur <= horizon
                urgent = d <= t + 2
                mempref = 0 if (i.kind in MEM and pen == 0) else 1
                return (0 if (fits or urgent) else 1, 0 if pen == 0 or urgent else 1, mempref if d - t < 200 else 1, d, i.id)
            cand.sort(key=key)
            i, pen, d = cand[0]
            fits = horizon is None or t + pen + i.dur <= horizon
            if fits or d <= t + 2:
                if not (pen > 0 and d > t + 6 and horizon is not None):
                    best = (i, pen)
        if best is None:
            t += 1
            if t > 100000:
                raise RuntimeError("scheduler stuck: " + repr([byid[x] for x in ready][:5]) + repr(m))
            continue
        i, pen = best
        commit(i, t + pen)
        t += pen + i.dur
        if i.kind in VALU:
            last_valu_end = t
    total = max(t, pipe)
    if verbose:
        print(f"schedule: {len(ins)} instr, ideal pipe {tend} slots, scheduled {total} slots ({total * 4} cycles)")
        agg = {}
        for kk, s in stalls:
            agg[kk // 10 * 10] = agg.get(kk // 10 * 10, 0) + s
        print("  pipe idle by backbone index:", agg)
    return out, total


def live_ranges(order, blks):
    n = len(order)
    times = [i.t for i in order]

    def idx_after(k, dt):
        j = k
        while j + 1 < n and times[j + 1] < times[k] + dt:
            j += 1
        return j
    ev = {}
    for k, i in enumerate(order):
        for e in i.rd:
            end = k
            if i.kind == 'vst':
                end = min(n - 1, k + 2)
            if i.kind in MFMA and i.srcc is not None and e in i.srcc.elems():
                end = idx_after(k, PASSES[i.kind] + 1)
            ev.setdefault(e, []).append(('r', k, end))
        for e in i.wr:
            end = k
            if i.kind in MFMA:
                end = idx_after(k, PASSES[i.kind] + 6)
            ev.setdefault(e, []).append(('w', k, end))
    rng = {}
    for b in blks:
        for x in range(b.size):
            e = (b, x)
            if b.persistent:
                rng[e] = [(-1, n + 1)]
                continue
            L = ev.get(e, [])
            iv = []
            cur = None
            for typ, k, end in L:
                if typ == 'r':
                    if cur is None:
                        assert b.carried, ("read before write", b, x, order[k])
                        cur = [-1, end]
                    cur[1] = max(cur[1], end)
                else:
                    if cur is not None and cur[1] < k:
                        iv.append(tuple(cur))
                        cur = None
                    if cur is None:
                        cur = [k, end]
                    cur[1] = max(cur[1], end)
            if cur is not None:
                if b.carried and L and L[0][0] == 'r':
                    cur[1] = n + 1
                iv.append(tuple(cur))
            rng[e] = iv
    return rng


def allocate(order, blks, nregs=256, tries=400, seed=0, verbose=False):
    rng = live_ranges(order, blks)
    n = len(order)
    press = [0] * (n + 3)
    for e, iv in rng.items():
        for a, b in iv:
            for k in range(max(a, 0), min(b, n - 1) + 1):
                press[k] += 1
    if verbose:
        mx = max(press)
        at = press.index(mx)
        print(f"  max live registers {mx} at index {at} of {n} (t={order[at].t})")
        if verbose > 1:
            d = {}
            for e, iv in rng.items():
                if any(a <= at <= b for a, b in iv):
                    d[e[0].name] = d.get(e[0].name, 0) + 1
            print("   ", d)
            print("    pressure profile:", [(order[x].t, press[x]) for x in range(0, n, max(1, n // 40))])
    rnd = random.Random(seed)
    free = [b for b in blks if b.base is None]
    fixed = [b for b in blks if b.base is not None]

    def mask(iv):
        m = 0
        for a, b in iv:
            lo, hi = 2 * (a + 1) + 1, 2 * (b + 1) + 1
            if a == b:
                hi = lo + 1
            m |= ((1 << (hi - lo)) - 1) << lo
        return m
    masks = {e: mask(iv) for e, iv in rng.items()}
    for k, i in enumerate(order):
        if i.kind in MFMA or i.kind in ('dsr', 'vld'):
            bit = 1 << (2 * (k + 1))
            for e in i.wr + i.rd:
                masks[e] |= bit
    weight = {b: sum(bin(masks[(b, x)]).count('1') for x in range(b.size)) for b in free}
    best = None
    for tr in range(tries):
        if tr == 0:
            seq = sorted(free, key=lambda b: (-b.size, -weight[b]))
        elif tr == 1:
            seq = sorted(free, key=lambda b: -weight[b])
        else:
            seq = sorted(free, key=lambda b: -(weight[b] * (0.3 + rnd.random()) + b.size * n * 0.5 * rnd.random()))
        occ = [0] * nregs
        for b in fixed:
            for x in range(b.size):
                occ[b.base + x] |= masks[(b, x)]
        ok = True
        place = {}
        for b in seq:
            found = None
            for base in range(0, nregs - b.size + 1, b.align):
                if all((occ[base + x] & masks[(b, x)]) == 0 for x in range(b.size)):
                    found = base
                    break
            if found is None:
                ok = False
                break
            place[b] = found
            for x in range(b.size):
                occ[found + x] |= masks[(b, x)]
        if ok:
            best = place
            break
    if best is None:
        return False
    for b, base in best.items():
        b.base = base
    if verbose:
        print(f"  allocated after {tr + 1} tries, highest register v{max(b.base + b.size for b in blks) - 1}")
    return True


def phys(e):
    return e[0].base + e[1]


class Raw(Ins):
    def __init__(self, kind, text, n=1):
        super().__init__(kind, text.replace("{", "{{").replace("}", "}}"), [], [], [])
        self.n = n


def required_states(p, c):
    pw = set(phys(e) for e in p.wr)
    cr = set(phys(e) for e in c.rd)
    cw = set(phys(e) for e in c.wr)
    need = 0
    if p.kind in MFMA:
        n = PASSES[p.kind]
        if c.kind in MFMA:
            cc = set(phys(e) for e in c.srcc.elems()) if c.srcc is not None else set()
            if pw & cc:
                same = c.kind == p.kind and cc == pw
                if not same:
                    need = max(need, n + 2)
            ab = set()
            for o in c.ops[1:4]:
                if isinstance(o, Reg) and o is not c.srcc:
                    ab |= set(phys(e) for e in o.elems())
            if pw & ab:
                need = max(need, n + 4)
        elif c.kind in VALU or c.kind in MEM:
            if pw & (cr | cw):
                need = max(need, n + 4)
            if p.srcc is not None and c.kind in VALU and set(phys(e) for e in p.srcc.elems()) & cw:
                need = max(need, n - 1)
    elif p.kind in VALU:
        if c.kind in MFMA and pw & cr:
            need = max(need, 2)
        if c.kind in VALU and pw & set(phys(e) for e in c.dpp):
            need = max(need, 2)
        if p.kind == 'trans' and c.kind in VALU and c.kind != 'trans' and pw & cr:
            need = max(need, 1)
        sw = set(p.swr)
        if sw & set(c.srd):
            if c.kind in VALU:
                need = max(need, 2)
            if c.kind in MEM:
                need = max(need, 5)
        if 'readlane' in c.fmt or 'readfirstlane' in c.fmt:
            if pw & cr:
                need = max(need, 1)
    elif p.kind == 'vst':
        pr = set(phys(e) for e in p.rd)
        if pr & cw:
            need = max(need, 2 if c.kind in VALU else 1)
    elif p.kind == 'salu':
        if 'm0' in p.swr and c.kind == 'dma':
            need = max(need, 1)
    return need


def fix_hazards(seq, wrap=None):
    pre = list(wrap[-40:]) if wrap else []
    out = list(pre)
    added = 0
    for c in seq:
        lo = max(0, len(out) - 40)
        worst = 0
        for a in range(len(out) - 1, lo - 1, -1):
            p = out[a]
            need = required_states(p, c)
            if need == 0:
                continue
            t = 0
            lastm_t, lastm_p = (0, PASSES[p.kind]) if p.kind in MFMA else (None, None)
            prev = p
            for q in out[a + 1:] + [c]:
                if q.kind == 'label':
                    continue
                t += getattr(prev, 'n', 1) if prev.kind == 'nop' else 1
                if q.kind in MFMA:
                    if lastm_t is not None:
                        t = max(t, lastm_t + lastm_p)
                    lastm_t, lastm_p = t, PASSES[q.kind]
                prev = q
            have = t - 1
            if have < need:
                tp = 0
                lm_t, lm_p = (0, PASSES[p.kind]) if p.kind in MFMA else (None, None)
                prev = p
                for q in out[a + 1:]:
                    if q.kind == 'label':
                        continue
                    tp += getattr(prev, 'n', 1) if prev.kind == 'nop' else 1
                    if q.kind in MFMA:
                        if lm_t is not None:
                            tp = max(tp, lm_t + lm_p)
                        lm_t, lm_p = tp, PASSES[q.kind]
                    prev = q
                tp += getattr(prev, 'n', 1) if prev.kind == 'nop' else 1
                worst = max(worst, need + 1 - tp)
        while worst > 0:
            k = min(worst, 16)
            out.append(Raw('nop', f"s_nop {k - 1}", n=k))
            added += k
            worst -= k
        out.append(c)
    return out[len(pre):], added


def insert_waits(seq, carried_lgkm=(), hoist=True):
    out = []
    lg = list(carried_lgkm)
    vm = []
    for c in seq:
        touched = set(phys(e) for e in c.rd) | set(phys(e) for e in c.wr)
        for q, name in ((lg, 'lgkmcnt'), (vm, 'vmcnt')):
            need = -1
            for k, p in enumerate(q):
                if p.kind in ('dsr', 'vld') and touched & set(phys(e) for e in p.wr):
                    need = k
                if p in getattr(c, 'wait_for', ()):
                    need = k
            if need >= 0:
                n = len(q) - need - 1
                assert n <= (15 if name == 'lgkmcnt' else 63), "counter overflow"
                w = Raw('wait', f"s_waitcnt {name}({n})")
                w.t = c.t
                at = len(out)
                if hoist and name == 'lgkmcnt' and q[need].t is not None:
                    j = len(out) - 1
                    while j >= 0 and out[j].kind not in ('dsr', 'dsw', 'smem', 'wait', 'barrier', 'label', 'branch'):
                        if out[j].kind in MFMA and out[j].t is not None and out[j].t >= q[need].t + 30:
                            if j + 1 >= len(out) or out[j + 1].kind not in SCALAR:
                                at = j + 1
                                break
                        if out[j].t is not None and out[j].t < q[need].t + 30:
                            break
                        j -= 1
                out.insert(at, w)
                del q[:need + 1]
        if c.kind == 'wait':
            txt = c.text()
            for q, name in ((lg, 'lgkmcnt'), (vm, 'vmcnt')):
                if name + "(" in txt:
                    n = int(txt.split(name + "(")[1].split(")")[0])
                    if len(q) > n:
                        del q[:len(q) - n]
        if c.kind in ('dsr', 'dsw'):
            lg.append(c)
            if len(lg) > 15:
                w = Raw('wait', "s_waitcnt lgkmcnt(14)")
                w.t = c.t
                out.append(w)
                del lg[:len(lg) - 15]
        if c.kind in ('vld', 'vst', 'dma'):
            vm.append(c)
        out.append(c)
    return out, lg


def estimate(seq):
    t = pipe = 0
    free = False
    lastv = -10
    for c in seq:
        if c.kind == 'label':
            continue
        if c.kind in MFMA:
            t = max(t, pipe)
            pipe = t + PASSES[c.kind]
            t += 2
            free = True
            continue
        if c.kind in SCALAR:
            n = getattr(c, 'n', 1) if c.kind == 'nop' else 1
            t += n - (1 if free else 0)
            free = False
            continue
        free = False
        if c.kind in MEM:
            t = max(t, lastv + 2)
        t += c.dur
        if c.kind in VALU:
            lastv = t
    return max(t, pipe)
```

```python
import sys, struct, math, os
sys.path.insert(0, os.path.dirname(os.path.abspath(__file__)))
from ir import *

NAME = "standalone__video_video_swin__vision"
NBYTES = 109734912
TS, RS = 27433728, 72576
NWIN, NWG = 2916, 256
PLANE = 9216
BUFSZ = 37632
RTAB = 36864
TAB = 3 * BUFSZ + 784
ENT = 784
F_BT, F_AS, F_BS, F_AT = 37632, 56064, 74496, 145408
WO_T, WO_S = 92928, 123088
LDS_BYTES = 163840
OOB = 0x40000000
C96 = 96 * 1e-5


def f32(x):
    return "0x%08x" % struct.unpack("<I", struct.pack("<f", x))[0]


OPT = dict(ld_nt=True, st_nt=True, lookahead=48, dump=0, reload=3)

SX, SO, SW, SW2 = "s[4:7]", "s[8:11]", "s[12:15]", "s[16:19]"
sWAVE, sNWIN, sCNT, sWID = "s20", "s21", "s22", "s23"
sB2, sB1, sB0, sBM = "s24", "s25", "s26", "s27"
sO0, sO1, sO2 = "s28", "s29", "s30"
sDT, sDS, sPL = "s31", "s42", "s43"
SEL = [None, "s[32:33]", "s[34:35]", "s[36:37]"]
MRG = [None, "s[38:39]", "s[40:41]", "s[44:45]"]
sT0, sT1, sT2, sT3 = "s46", "s47", "s48", "s49"
sM0 = "s50"
sKA, sKB = "s52", "s54"


def aBT(m, s): k = 4 * (3 * m + s); return f"a[{k}:{k + 3}]"
def aAT(m, s): k = 72 + 4 * (3 * m + s); assert k < 112; return f"a[{k}:{k + 3}]"
def aAS(m, s): k = 112 + 4 * (6 * m + s); return f"a[{k}:{k + 3}]"
def aBS(m, s): k = 184 + 4 * (6 * m + s); return f"a[{k}:{k + 3}]"
def medoff(m, s): return (m >> 1) * 6144 + s * 2048 + (m & 1) * 1024
def bigoff(m, s): return (6 * m + s) * 1024


class K:
    def __init__(self):
        mk = lambda n, s=1: Blk(n, s, persistent=True)
        self.goff = mk('goff', 10)
        self.aT = mk('aT', 3)
        self.aRw = mk('aRw')
        self.aY = mk('aY', 4)
        self.aStg = mk('aStg')
        self.aStg48 = mk('aStg48')
        self.aRrow = mk('aRrow')
        self.aR48 = mk('aR48')
        self.aRcol = mk('aRcol', 2)
        self.aW = mk('aW')
        self.mskA = mk('mskA')
        self.cB = mk('cB')
        self.ones = mk('ones', 4)
        self.idm = mk('idm', 2)
        self.diag = mk('diag')
        self.neg = mk('neg')
        self.smfA = mk('smfA', 4)
        self.smfI = mk('smfI')
        self.V3 = mk('V3', 10)
        self.all = [self.V3, self.goff, self.ones, self.smfA, self.aY, self.idm, self.aRcol, self.aT, self.aRw, self.aStg,
                    self.aStg48, self.aRrow, self.aR48, self.aW, self.mskA, self.cB, self.diag, self.neg, self.smfI]
        top = 256
        for b in self.all:
            top -= b.size
            if b.size > 1 and top % 2:
                top -= 1
            b.base = top
        self.low = top


def merge(p, k, vals, name):
    nt = len(vals)
    out = []
    res = [p.v(f"{name}{i}")[0] for i in range(len(vals[0]))]
    cur = list(vals[0])
    for j in range(1, nt):
        p.salu("s_mov_b64", "vcc", MRG[j])
        for i in range(len(cur)):
            p.valu("v_cndmask_b32_dpp", res[i], vals[j][i], cur[i], "vcc", dpp=True,
                   mods=f"row_ror:{4 * j} row_mask:0xf bank_mask:0xf")
            cur[i] = res[i]
    return cur


def ln_finish(p, k, Q, SUM, name):
    nt = len(Q)
    sel = []
    for j in range(nt):
        d = p.v(f"{name}d{j}")[0]
        p.valu("v_cndmask_b32_e64", d, Q[j][0], Q[j][1], SEL[1])
        p.valu("v_cndmask_b32_e64", d, d, Q[j][2], SEL[2])
        p.valu("v_cndmask_b32_e64", d, d, Q[j][3], SEL[3])
        sel.append([d, SUM[j][0]])
    q, s = merge(p, k, sel, name + "m")
    t = p.v(name + "t")[0]
    p.valu("v_mul_f32", t, s, s)
    p.valu("v_fmamk_f32", t, t, f32(-1.0 / 96), q)
    p.valu("v_max_f32", t, 0, t)
    p.valu("v_add_f32", t, f32(C96), t)
    r = p.v(name + "r")[0]
    p.trans("v_rsq_f32", r, t)
    return r


def gen_T(p, k, nt, xload, aTx, stream_w):
    g = {n: [] for n in ('q1', 'G', 'S', 'V', 'PV', 'q2')}
    X = [p.v(f"X{j}", 20) for j in range(nt)]
    xs = lambda j, s: X[j][2 + 6 * s: 6 + 6 * s]
    g['xld'] = xload(X, xs)
    Q = [p.v(f"Q{j}", 4) for j in range(nt)]
    SUM = [p.v(f"SUM{j}", 4) for j in range(nt)]
    for j in range(nt):
        for s in range(3):
            g['q1'].append(p.mfma('med', Q[j].all, xs(j, s), xs(j, s), Q[j].all if s else 0))
        for s in range(3):
            g['q1'].append(p.mfma('med', SUM[j].all, k.ones.all, xs(j, s), SUM[j].all if s else 0))
    r1 = ln_finish(p, k, Q, SUM, "l1")
    GP = [p.v(f"GP{j}", 12) for j in range(nt)]
    for m in range(6):
        W = []
        for s in range(3):
            if 3 * m + s < 10:
                W.append(aAT(m, s))
            else:
                w = p.v(f"WS{m}_{s}", 4)
                p.dsr(w.all, k.aW[0], off=medoff(m, s))
                W.append(w.all)
        for j in range(nt):
            acc = p.v(f"GA{j}_{m}", 4)
            for s in range(3):
                g['G'].append(p.mfma('med', acc.all, W[s], xs(j, s), acc.all if s else 0))
            p.valu("v_cvt_pk_bf16_f32", GP[j][2 * m], acc[0], acc[1])
            p.valu("v_cvt_pk_bf16_f32", GP[j][2 * m + 1], acc[2], acc[3])
    ST = [p.v(f"ST{j}", 4) for j in range(nt)]
    for j in range(nt):
        for s in range(3):
            g['S'].append(p.mfma('med', ST[j].all, xs(j, s), GP[j][4 * s:4 * s + 4], ST[j].all if s else 0))
    VI = [p.v(f"VI{j}", 18) for j in range(nt)]
    vslot = lambda j, m: VI[j][6 * (m >> 1) + 4 * (m & 1): 6 * (m >> 1) + 4 * (m & 1) + 2]
    g['idmov'] = []
    for j in range(nt):
        grp = []
        for m in range(6):
            acc = p.v(f"VA{j}_{m}", 4)
            for s in range(3):
                grp.append(p.mfma('med', acc.all, xs(j, s), aBT(m, s), acc.all if s else 0))
            p.valu("v_cvt_pk_bf16_f32", vslot(j, m)[0], acc[0], acc[1])
            p.valu("v_cvt_pk_bf16_f32", vslot(j, m)[1], acc[2], acc[3])
        g['V'].append(grp)
        for s in range(3):
            for e in range(2):
                g['idmov'].append(p.valu("v_mov_b32", VI[j][6 * s + 2 + e], k.idm[e], release=grp[0]))
    S = merge(p, k, [[ST[j][r] for r in range(4)] for j in range(nt)], "Sm")
    T4 = p.v("T4", 4)
    for r in range(4):
        p.valu("v_mul_f32_dpp", T4[r], r1, S[r], dpp=True, mods=f"quad_perm:[{r},{r},{r},{r}] row_mask:0xf bank_mask:0xf")
    mx = p.v("tmx")[0]
    p.valu("v_max3_f32", mx, T4[0], T4[1], T4[2])
    p.valu("v_max_f32", mx, mx, T4[3])
    p.valu("v_mul_f32_e64", mx, mx, r1, fmt="v_mul_f32_e64 {}, -{}, {}")
    for r in range(4):
        p.valu("v_fma_f32", T4[r], T4[r], r1, mx)
    for r in range(4):
        p.trans("v_exp_f32", T4[r], T4[r])
    l0, l1 = p.v("tl0")[0], p.v("tl1")[0]
    p.valu("v_add_f32", l0, T4[0], T4[1])
    p.valu("v_add_f32", l1, T4[2], T4[3])
    p.valu("v_add_f32", l0, l0, l1)
    p.trans("v_rcp_f32", l0, l0)
    for r in range(4):
        p.valu("v_mul_f32_dpp", T4[r], r1, T4[r], dpp=True, mods=f"quad_perm:[{r},{r},{r},{r}] row_mask:0xf bank_mask:0xf")
    for r in range(4):
        p.valu("v_mul_f32", T4[r], T4[r], l0)
    PM = p.v("PM", 2)
    p.valu("v_cvt_pk_bf16_f32", PM[0], T4[0], T4[1])
    p.valu("v_cvt_pk_bf16_f32", PM[1], T4[2], T4[3])
    YP = [p.v(f"YP{j}", 12) for j in range(nt)]
    Q2 = [p.v(f"Q2{j}", 4) for j in range(nt)]
    SUM2 = [p.v(f"SUM2{j}", 4) for j in range(nt)]
    g['ywr'] = []
    for j in range(nt):
        for c in range(4):
            for e in range(2):
                if j == 0:
                    p.valu("v_and_b32", X[j][6 * c + e], PM[e], k.diag[0])
                else:
                    p.valu("v_and_b32_dpp", X[j][6 * c + e], PM[e], k.diag[0], dpp=True, release=g['V'][j][6],
                           mods=f"row_ror:{16 - 4 * j} row_mask:0xf bank_mask:0xf")
        pv, q2 = [], []
        for m in range(6):
            s, e = m >> 1, m & 1
            acc = p.v(f"OA{j}_{m}", 4)
            a = VI[j][6 * s + 2 * e: 6 * s + 2 * e + 4]
            b = X[j][6 * s + 4 * e: 6 * s + 4 * e + 4]
            pv.append(p.mfma('med', acc.all, a, b, 0))
            p.valu("v_cvt_pk_bf16_f32", YP[j][2 * m], acc[0], acc[1])
            p.valu("v_cvt_pk_bf16_f32", YP[j][2 * m + 1], acc[2], acc[3])
        for s in range(3):
            g['ywr'].append(p.dsw(aTx(j), YP[j][4 * s:4 * s + 4], off=64 * s))
        for s in range(3):
            q2.append(p.mfma('med', Q2[j].all, YP[j][4 * s:4 * s + 4], YP[j][4 * s:4 * s + 4], Q2[j].all if s else 0))
        for s in range(3):
            q2.append(p.mfma('med', SUM2[j].all, k.ones.all, YP[j][4 * s:4 * s + 4], SUM2[j].all if s else 0))
        g['PV'].append(pv)
        g['q2'].append(q2)
    r2 = ln_finish(p, k, Q2, SUM2, "l2")
    g['ywr'].append(p.dsw(k.aRw[0], r2))
    return g


def softmax_S(p, k, u, S0, S1, RK, RK48, rq, P):
    el = [S0[i] for i in range(16)] + [S1[i] for i in range(9)]
    rk = [RK[i] for i in range(24)] + [RK48]
    for i in range(24):
        p.valu("v_mul_f32", el[i], el[i], rk[i])
    p.valu("v_fma_f32", el[24], el[24], rk[24], k.neg[0])
    m0, m1 = p.v(f"mxa{u}")[0], p.v(f"mxb{u}")[0]
    p.valu("v_max3_f32", m0, el[0], el[1], el[2])
    p.valu("v_max3_f32", m1, el[3], el[4], el[5])
    for i in range(6, 24, 4):
        p.valu("v_max3_f32", m0, m0, el[i], el[i + 1])
        if i + 3 < 25:
            p.valu("v_max3_f32", m1, m1, el[i + 2], el[i + 3])
    p.valu("v_max3_f32", m0, m0, m1, el[24])
    p.valu("v_mov_b32", m1, m0)
    p.swap32(m0, m1)
    p.valu("v_max_f32", m0, m0, m1)
    p.valu("v_mul_f32_e64", m0, m0, rq, fmt="v_mul_f32_e64 {}, -{}, {}")
    for i in range(25):
        p.valu("v_fma_f32", el[i], el[i], rq, m0)
        p.trans("v_exp_f32", el[i], el[i])
    l0, l1 = p.v(f"la{u}")[0], p.v(f"lb{u}")[0]
    p.valu("v_add_f32", l0, el[0], el[1])
    p.valu("v_add_f32", l1, el[2], el[3])
    for i in range(4, 25):
        d = l0 if i % 2 == 0 else l1
        p.valu("v_add_f32", d, d, el[i])
    p.valu("v_add_f32", l0, l0, l1)
    p.valu("v_mov_b32", l1, l0)
    p.swap32(l0, l1)
    p.valu("v_add_f32", l0, l0, l1)
    p.trans("v_rcp_f32", l0, l0)
    for i in range(25):
        p.valu("v_mul_f32", el[i], el[i], rk[i])
    for i in range(25):
        p.valu("v_mul_f32", el[i], el[i], l0)
        if i % 2 == 1:
            p.valu("v_cvt_pk_bf16_f32", P[i >> 1], el[i - 1], el[i])
    return el[24]


def gen_PV(p, k, u, Y, VP, P, aYe, aYo):
    mf, wr = [], []
    for m in range(3):
        acc = p.v(f"O{u}_{m}", 16)
        for ks in range(3):
            mf.append(p.mfma('big', acc.all, VP[m][4 * ks:4 * ks + 4], P[4 * ks:4 * ks + 4], acc.all if ks else 0))
        mf.append(p.mfma('big', acc.all, k.V3[2 * m:2 * m + 4], k.V3[6:10], acc.all))
        mf.append(p.smfmac('big', acc.all, k.smfA.all, Y[8 * m:8 * m + 8], k.smfI[0]))
        for h in range(2):
            o = p.v(f"OP{u}_{m}_{h}", 4)
            for i in range(4):
                p.valu("v_cvt_pk_bf16_f32", o[i], acc[8 * h + 2 * i], acc[8 * h + 2 * i + 1])
            wr.append(p.dsw(aYo if h else aYe, o.all, off=64 * m))
    return mf, wr


def gen_body(k):
    p = Prog()
    g = {}
    ldf = " nt" if OPT['ld_nt'] else ""
    stf = " nt" if OPT['st_nt'] else ""
    Y1 = p.v("Y1", 24, carried=True)
    P1 = p.v("P1", 12, carried=True)
    VP = [p.v(f"VP{m}", 12, carried=True) for m in range(3)]
    p.part = 'C'
    p.salu("s_sub_u32", sDS, sO1, sO0)
    p.salu("s_sub_u32", sDT, sO0, sO2)
    p.salu("s_add_u32", sM0, sO0, sPL)
    p.part = 'Sb'
    g['PV1'], wr1 = gen_PV(p, k, 1, Y1, VP, P1, k.aY[2], k.aY[3])
    g['wr1'] = wr1
    st, sr = [], []
    for i in range(10):
        d = p.v(f"STG{i}", 4)
        if i < 9:
            r = p.dsr(d.all, k.aStg[0], off=1024 * i, after=wr1 if i >= 6 else [])
        else:
            r = p.dsr(d.all, k.aStg48[0], after=wr1)
        sr.append(r)
        s = p.add('vst', "buffer_store_dwordx4 {}, {}, " + SO + ", " + sBM + " offen" + stf, [d.all, k.goff[i]],
                  rd=[d.all, k.goff[i]], srd=[sBM, 's10'], after=st[-1:])
        st.append(s)
    g['st'], g['sr'] = st, sr
    p.part = 'D'
    dm = []
    for i in range(9):
        p.salu("s_add_u32", "m0", sM0, 1024 * i)
        dm.append(p.add('dma', "buffer_load_dwordx4 {}, " + SX + ", " + sB2 + " offen" + ldf + " lds", [k.goff[i]],
                        rd=[k.goff[i]], srd=['m0', sB2, 's6'], after=[st[i]] + dm[-1:]))
    g['dma'] = dm
    p.part = 'A'
    dv = p.v("dv")[0]
    p.valu("v_and_b32", dv, sDS, k.mskA[0])
    p.valu("v_add_u32", k.aY[0], sDS, k.aY[0])
    p.valu("v_add_u32", k.aY[1], sDS, k.aY[1])
    p.valu("v_add3_u32", k.aY[2], k.aY[2], dv, k.cB[0])
    p.valu("v_add3_u32", k.aY[3], k.aY[3], dv, k.cB[0])
    p.valu("v_add3_u32", k.aRcol[1], k.aRcol[1], dv, k.cB[0])
    p.valu("v_add_u32", k.aRcol[0], sDS, k.aRcol[0])
    p.valu("v_add_u32", k.aRrow[0], sDS, k.aRrow[0])
    p.valu("v_add_u32", k.aStg[0], sDS, k.aStg[0])
    p.valu("v_add_u32", k.aR48[0], ENT, k.aR48[0])
    p.valu("v_add_u32", k.aStg48[0], ENT, k.aStg48[0])
    p.part = 'Sa'
    yload = lambda Yb, u: [p.dsr(Yb[4 * s:4 * s + 4], k.aY[2 * u + (s & 1)], off=64 * (s >> 1)) for s in range(6)]
    Y0 = p.v("Y0", 24)
    Yb = [Y0, Y1]
    Ya = [p.v("Ya0", 24) if OPT['reload'] & 1 else Y0, p.v("Ya1", 24) if OPT['reload'] & 2 else Y1]
    g['ya0'], g['ya1'] = yload(Ya[0], 0), yload(Ya[1], 1)
    RK = p.v("RK", 24)
    RK48 = p.v("RK48")[0]
    RQ = p.v("RQ", 2, align=1)
    g['rk'] = [p.dsr(RK[4 * a:4 * a + 4], k.aRrow[0], off=32 * a) for a in range(6)]
    g['rk'] += [p.dsr(RK48, k.aR48[0]), p.dsr(RQ[0], k.aRcol[0])]
    g['rq1'] = [p.dsr(RQ[1], k.aRcol[1])]
    SS = []
    for u in range(2):
        Y = Ya if u == 0 else Yb
        if u == 1:
            g['yb0'] = yload(Y0, 0) if OPT['reload'] & 1 else []
            g['yb1'] = yload(Y1, 1) if OPT['reload'] & 2 else []
        GP = p.v(f"SG{u}", 24)
        g[f'G{u}'] = []
        for m in range(3):
            acc = p.v(f"SGA{u}_{m}", 16)
            for s in range(6):
                g[f'G{u}'].append(p.mfma('big', acc.all, aAS(m, s), Y[u][4 * s:4 * s + 4], acc.all if s else 0))
            for i in range(8):
                p.valu("v_cvt_pk_bf16_f32", GP[8 * m + i], acc[2 * i], acc[2 * i + 1])
        S0, S1 = p.v(f"S{u}0", 16), p.v(f"S{u}1", 16)
        g[f'S{u}'] = []
        for kt, Sx in enumerate((S0, S1)):
            for s in range(6):
                g[f'S{u}'].append(p.mfma('big', Sx.all, Y[kt][4 * s:4 * s + 4], GP[4 * s:4 * s + 4], Sx.all if s else 0))
        SS.append((S0, S1))
    Y = Yb
    g['V'] = []
    for m in range(3):
        for u in range(2):
            acc = p.v(f"SVA{u}_{m}", 16)
            grp = []
            for s in range(6):
                grp.append(p.mfma('big', acc.all, Y[u][4 * s:4 * s + 4], aBS(m, s), acc.all if s else 0))
            g['V'].append(grp)
            for i in range(8 if u == 0 else 4):
                p.valu("v_cvt_pk_bf16_f32", VP[m][8 * u + i], acc[2 * i], acc[2 * i + 1])
            if u == 1:
                p.valu("v_cvt_pk_bf16_f32", k.V3[2 * m], acc[8], acc[9])
    P0 = p.v("P0", 12)
    e = softmax_S(p, k, 0, SS[0][0], SS[0][1], RK, RK48, RQ[0], P0)
    p.valu("v_cvt_pk_bf16_f32", k.V3[6], e, 0)
    g['PV0'], g['wr0'] = gen_PV(p, k, 0, Y0, VP, P0, k.aY[0], k.aY[1])
    e = softmax_S(p, k, 1, SS[1][0], SS[1][1], RK, RK48, RQ[1], P1)
    p.valu("v_cvt_pk_bf16_f32", k.V3[6], e, 0)
    p.part = 'T'

    def xload(X, xs):
        return [p.dsr(xs(j, s), k.aT[j], off=64 * s) for j in range(3) for s in range(3)]
    gt = gen_T(p, k, 3, xload, lambda j: k.aT[j], True)
    for j in range(3):
        p.valu("v_add_u32", k.aT[j], sDT, k.aT[j])
    p.valu("v_add_u32", k.aRw[0], sDT, k.aRw[0])
    g['T'] = gt
    p.part = 'C'
    p.salu("s_mov_b32", sT0, sO0)
    p.salu("s_mov_b32", sO0, sO1)
    p.salu("s_mov_b32", sO1, sO2)
    p.salu("s_mov_b32", sO2, sT0)
    p.salu("s_mov_b32", sBM, sB0)
    p.salu("s_mov_b32", sB0, sB1)
    p.salu("s_mov_b32", sB1, sB2)
    p.salu("s_mov_b32", "s10", NBYTES)
    p.salu("s_add_u32", sWID, sWID, NWG)
    p.salu("s_cmp_lt_u32", None, sWID, NWIN)
    p.salu("s_cselect_b32", "s6", NBYTES, 0)
    p.salu("s_min_u32", sT1, sWID, NWIN - 1)
    winbase(p, sB2, sT1)
    return p, g


def winbase(p, dst, w):
    p.salu("s_mul_hi_u32", sT2, w, 79536432)
    p.salu("s_mul_i32", sT3, sT2, 54)
    p.salu("s_sub_u32", sT3, w, sT3)
    p.salu("s_mul_i32", sT2, sT2, 7 * RS)
    p.salu("s_mul_i32", sT3, sT3, 1344)
    p.salu("s_add_u32", dst, sT2, sT3)


def hint(lst, release=None, deadline=None):
    for i in lst:
        if release is not None:
            i.release = release
        if deadline is not None:
            i.deadline = deadline


def backbone_body(g):
    t = g['T']
    V = g['V']
    PV1, G0, S0, G1, S1, PV0 = g['PV1'], g['G0'], g['S0'], g['G1'], g['S1'], g['PV0']
    TV = t['V']
    bb = []
    bb += PV1 + G0 + S0[0:4] + S0[6:10] + S0[4:6] + S0[10:12]
    bb += t['q1'] + t['G'] + t['S'] + TV[0] + TV[1] + t['PV'][0] + TV[2]
    bb += t['PV'][1] + G1[0:3] + t['q2'][0] + G1[3:6] + t['PV'][2] + G1[6:12] + t['q2'][1] + G1[12:18] + t['q2'][2]
    bb += S1 + V[0] + V[1] + V[2] + V[3] + V[4] + V[5] + PV0
    hint(g['ya0'], release=PV1[5])
    hint(g['ya1'], release=G0[3])
    hint(g['rk'], release=S0[2])
    hint(g['rq1'], release=S1[0])
    hint(g['yb1'], release=TV[2][6])
    hint(g['yb0'], release=G1[8])
    hint(t['xld'], release=S0[0])
    for i, r in enumerate(g['sr']):
        r.release = (PV1[0] if i < 2 else g['st'][i - 2])
    hint(g['st'], deadline=S0[6])
    hint(g['dma'], deadline=S0[10])
    hint(t['ywr'], deadline=S1[6])
    t['ywr'][-1].deadline = V[0][0]
    return bb


def gen_prologue(k):
    p = Prog()
    p.blks += k.all
    R = lambda kind, text: p.ins.append(Raw(kind, text))
    v0 = Blk('v0', 1, persistent=True)
    v0.base = 0
    p.blks.append(v0)
    tid = v0[0]
    T = lambda n: p.v(n)[0]
    R('salu', f"s_cmp_ge_u32 s2, {NWG}")
    R('branch', "s_cbranch_scc1 L_end")
    R('smem', "s_load_dwordx4 s[56:59], s[0:1], 0")
    R('smem', "s_load_dwordx4 s[60:63], s[0:1], 16")
    R('smem', "s_load_dwordx4 s[64:67], s[0:1], 32")
    lane, wv = T('lane'), T('wv')
    p.valu("v_and_b32", lane, 63, tid)
    p.valu("v_lshrrev_b32", wv, 6, tid)
    p.add('valu', "v_readfirstlane_b32 " + sWAVE + ", {}", [wv], rd=[wv], swr=[sWAVE])
    n16, g4 = T('n16'), T('g4')
    p.valu("v_and_b32", n16, 15, lane)
    p.valu("v_lshrrev_b32", g4, 4, lane)
    a, b = T('a'), T('b')
    aL, aRr = T('aL'), T('aRr')
    p.valu("v_lshrrev_b32", a, 2, n16)
    p.valu("v_and_b32", b, 3, n16)
    p.valu("v_lshl_add_u32", a, a, 3, b)
    p.valu("v_mul_u32_u24", aL, 576, a)
    p.valu("v_lshl_add_u32", aL, g4, 4, aL)
    p.valu("v_mul_u32_u24", aRr, 576, n16)
    p.valu("v_lshl_add_u32", aRr, g4, 4, aRr)
    R('wait', "s_waitcnt lgkmcnt(0)")
    for d, s in (("s4", "s56"), ("s5", "s57"), ("s8", "s66"), ("s9", "s67")):
        p.salu("s_mov_b32", d, s)
    p.salu("s_mov_b32", "s6", NBYTES)
    p.salu("s_mov_b32", "s7", "0x00020000")
    p.salu("s_mov_b32", "s10", 0)
    p.salu("s_mov_b32", "s11", "0x00020000")
    p.salu("s_cmp_ge_u32", None, sWAVE, 2)
    p.salu("s_cselect_b32", "s12", "s62", "s58")
    p.salu("s_cselect_b32", "s13", "s63", "s59")
    p.salu("s_cselect_b32", "s16", "s64", "s60")
    p.salu("s_cselect_b32", "s17", "s65", "s61")
    p.salu("s_mov_b32", sM0, WO_T)
    p.salu("s_cselect_b32", sM0, WO_S, sM0)
    p.salu("s_mov_b32", "s14", 55296)
    p.salu("s_mov_b32", "s15", "0x00020000")
    p.salu("s_mov_b32", "s18", 18432)
    p.salu("s_mov_b32", "s19", "0x00020000")
    p.salu("s_and_b32", sT0, sWAVE, 1)
    p.salu("s_mul_i32", sT1, sT0, 384)
    lin = T('lin')
    p.valu("v_lshlrev_b32", lin, 4, lane)
    for kt in range(6):
        row = 32 * (kt >> 1) + 4 * (kt & 1)
        p.salu("s_add_u32", sT2, sT1, row * 576)
        for si in range(3):
            q = 4 * (3 * kt + si)
            p.add('vld', f"buffer_load_dwordx4 a[{q}:{q + 3}], {{}}, {SW}, {sT2} offen offset:{64 * si}", [aL], rd=[aL], srd=[sT2])
    p.salu("s_cmp_lg_u32", None, sT0, 0)
    R('branch', "s_cbranch_scc1 L_fold_b")
    for ct in range(6):
        p.salu("s_mov_b32", sT2, 16 * ct * 576 + 192)
        for si in range(3):
            q = 72 + 4 * (3 * ct + si)
            p.add('vld', f"buffer_load_dwordx4 a[{q}:{q + 3}], {{}}, {SW}, {sT2} offen offset:{64 * si}", [aRr], rd=[aRr], srd=[sT2])
    R('branch', "s_branch L_fold_c")
    R('label', "L_fold_b:")
    for i in range(18):
        p.salu("s_add_u32", "m0", sM0, 1024 * i)
        p.salu("s_mov_b32", sT2, 1024 * i)
        p.add('dma', f"buffer_load_dwordx4 {{}}, {SW2}, {sT2} offen lds", [lin], rd=[lin], srd=['m0', sT2])
    R('label', "L_fold_c:")
    p.salu("s_cmp_lt_u32", None, "s2", NWIN - 11 * NWG)
    p.salu("s_cselect_b32", sNWIN, 12, 11)
    winbase(p, sB0, "s2")
    p.salu("s_add_u32", sWID, "s2", NWG)
    winbase(p, sB1, sWID)
    p.salu("s_add_u32", sWID, sWID, NWG)
    winbase(p, sB2, sWID)
    p.salu("s_mov_b32", sBM, sB0)
    p.salu("s_mov_b32", sO0, 2 * BUFSZ)
    p.salu("s_mov_b32", sO1, 0)
    p.salu("s_mov_b32", sO2, BUFSZ)
    p.salu("s_mul_i32", sPL, sWAVE, PLANE)
    q, pp, pos, sw, row = T('q'), T('pp'), T('pos'), T('sw'), T('row')
    tbase = T('tbase')
    p.salu("s_mul_i32", sT2, sWAVE, TS)
    p.valu("v_mov_b32", tbase, sT2)
    for i in range(9):
        p.valu("v_add_u32", q, 64 * i, lane)
        p.valu("v_mul_u32_u24", pp, 5462, q)
        p.valu("v_lshrrev_b32", pp, 16, pp)
        p.valu("v_mul_u32_u24", pos, 12, pp)
        p.valu("v_sub_u32", pos, q, pos)
        p.valu("v_lshrrev_b32", sw, 2, pp)
        p.valu("v_and_b32", a, 2, pp)
        p.valu("v_xor_b32", sw, sw, a)
        p.valu("v_xor_b32", sw, sw, wv)
        p.valu("v_and_b32", sw, 3, sw)
        p.valu("v_xor_b32", pos, pos, sw)
        p.valu("v_mul_u32_u24", row, 9363, pp)
        p.valu("v_lshrrev_b32", row, 16, row)
        p.valu("v_mul_u32_u24", a, RS - 7 * 192, row)
        p.valu("v_mul_u32_u24", b, 192, pp)
        p.valu("v_add3_u32", a, a, b, tbase)
        p.valu("v_lshl_add_u32", k.goff[i], pos, 4, a)
    p.valu("v_add_u32", a, 6 * RS + 6 * 192, tbase)
    p.valu("v_add_u32", a, a, lin)
    oob = T('oob')
    p.valu("v_mov_b32", oob, OOB)
    p.add('valu', "v_cmp_gt_u32 s[68:69], 12, {}", [lane], rd=[lane], swr=['s68', 's69'])
    p.valu("v_cndmask_b32_e64", k.goff[9], oob, a, "s[68:69]")
    ldf = " nt" if OPT['ld_nt'] else ""
    for i in range(9):
        p.salu("s_add_u32", "m0", sPL, 1024 * i)
        p.add('dma', "buffer_load_dwordx4 {}, " + SX + ", " + sB0 + " offen" + ldf + " lds", [k.goff[i]], rd=[k.goff[i]], srd=['m0', sB0])
    lo = Blk('lo', 1, persistent=True)
    lo.base = k.low - 1
    p.blks.append(lo)
    aT3 = Blk('aT3', 1, persistent=True)
    aT3.base = k.low - 2
    p.blks.append(aT3)
    ii, ww, tt = T('ii'), T('ww'), T('tt')
    p.valu("v_lshrrev_b32", ii, 2, n16)
    p.valu("v_lshl_add_u32", ii, wv, 2, ii)
    p.valu("v_and_b32", tt, 3, n16)
    p.valu("v_lshlrev_b32", ww, 8, ii)
    p.valu("v_add_u32", ww, "s2", ww)
    p.salu("s_mov_b32", sT2, 79536432)
    p.valu("v_mul_hi_u32", a, ww, sT2)
    p.valu("v_mul_u32_u24", b, 54, a)
    p.valu("v_sub_u32", b, ww, b)
    p.salu("s_mov_b32", sT2, 7 * RS)
    p.valu("v_mul_lo_u32", a, a, sT2)
    p.valu("v_mul_u32_u24", b, 1344, b)
    p.salu("s_mov_b32", sT3, TS)
    p.valu("v_mul_lo_u32", q, tt, sT3)
    p.valu("v_add3_u32", a, a, b, q)
    p.valu("v_add_u32", a, 6 * RS + 6 * 192, a)
    p.valu("v_lshl_add_u32", a, g4, 4, a)
    p.add('valu', "v_cmp_gt_u32 s[68:69], " + sNWIN + ", {}", [ii], rd=[ii], srd=[sNWIN], swr=['s68', 's69'])
    p.valu("v_cndmask_b32_e64", lo[0], oob, a, "s[68:69]")
    p.valu("v_mul_u32_u24", a, ENT, ii)
    p.valu("v_mul_u32_u24", b, 192, tt)
    p.valu("v_add_u32", a, TAB, a)
    p.valu("v_add_u32", a, a, b)
    p.valu("v_lshl_add_u32", a, g4, 4, a)
    p.add('valu', "v_cmp_gt_u32 s[68:69], 12, {}", [ii], rd=[ii], swr=['s68', 's69'])
    p.valu("v_cndmask_b32_e64", aT3[0], oob, a, "s[68:69]")
    ppx = T('ppx')
    p.valu("v_lshrrev_b32", ppx, 2, n16)
    for j in range(3):
        p.valu("v_mul_u32_u24", pp, 12, wv)
        p.valu("v_add3_u32", pp, pp, ppx, 4 * j)
        p.valu("v_lshrrev_b32", sw, 2, pp)
        p.valu("v_and_b32", a, 2, pp)
        p.valu("v_xor_b32", sw, sw, a)
        p.valu("v_xor_b32", sw, sw, tt)
        p.valu("v_xor_b32", sw, sw, g4)
        p.valu("v_and_b32", sw, 3, sw)
        p.valu("v_mul_u32_u24", a, PLANE, tt)
        p.valu("v_mul_u32_u24", b, 192, pp)
        p.valu("v_add_u32", a, a, b)
        p.valu("v_lshl_add_u32", k.aT[j], sw, 4, a)
    jj = T('jj')
    p.valu("v_sub_u32", jj, ppx, g4)
    p.valu("v_and_b32", jj, 3, jj)
    p.valu("v_mul_u32_u24", a, 12, wv)
    p.valu("v_lshl_add_u32", a, jj, 2, a)
    p.valu("v_add_u32", a, a, g4)
    p.valu("v_mul_u32_u24", b, 48, tt)
    p.valu("v_add_u32", a, a, b)
    p.valu("v_lshlrev_b32", a, 2, a)
    p.valu("v_add_u32", a, RTAB, a)
    p.valu("v_lshl_add_u32", b, wv, 2, g4)
    p.add('valu', "v_cmp_gt_u32 s[68:69], 12, {}", [b], rd=[b], swr=['s68', 's69'])
    p.valu("v_mul_u32_u24", b, ENT, b)
    p.valu("v_lshl_add_u32", b, tt, 2, b)
    p.valu("v_add_u32", b, TAB + 768, b)
    p.valu("v_cndmask_b32_e64", b, oob, b, "s[68:69]")
    for j in range(1, 4):
        p.add('valu', f"v_cmp_ne_u32 {MRG[j]}, {j}, {{}}", [jj], rd=[jj], swr=Prog._sregs([MRG[j]]))
        p.add('valu', f"v_cmp_eq_u32 {SEL[j]}, {j}, {{}}", [tt], rd=[tt], swr=Prog._sregs([SEL[j]]))
    p.valu("v_cndmask_b32_e64", k.aRw[0], b, a, MRG[3])
    p.add('valu', "v_cmp_eq_u32 s[68:69], 0, {}", [jj], rd=[jj], swr=['s68', 's69'])
    p.valu("v_cndmask_b32_e64", k.diag[0], 0, -1, "s[68:69]")
    one_lo, one_hi = T('one_lo'), T('one_hi')
    p.valu("v_mov_b32", one_lo, "0x3f80")
    p.valu("v_mov_b32", one_hi, "0x3f800000")
    p.valu("v_cndmask_b32_e64", a, one_lo, one_hi, SEL[1])
    p.valu("v_cndmask_b32_e64", a, a, 0, SEL[2])
    p.valu("v_cndmask_b32_e64", a, a, 0, SEL[3])
    p.valu("v_and_b32", k.idm[0], a, k.diag[0])
    p.valu("v_cndmask_b32_e64", a, 0, one_lo, SEL[2])
    p.valu("v_cndmask_b32_e64", a, a, one_hi, SEL[3])
    p.valu("v_and_b32", k.idm[1], a, k.diag[0])
    for i in range(4):
        p.valu("v_mov_b32", k.ones[i], "0x3f803f80")
    for i in range(10):
        p.valu("v_mov_b32", k.V3[i], 0)
    m32, hh = T('m32'), T('hh')
    p.valu("v_and_b32", m32, 31, lane)
    p.valu("v_lshrrev_b32", hh, 5, lane)
    pl = T('pl')
    p.valu("v_mov_b32", pl, sPL)
    p.valu("v_add_u32", pl, 2 * BUFSZ, pl)
    p.valu("v_lshrrev_b32", sw, 2, m32)
    p.valu("v_and_b32", a, 2, m32)
    p.valu("v_xor_b32", sw, sw, a)
    p.valu("v_xor_b32", sw, sw, wv)
    p.valu("v_xor_b32", sw, sw, hh)
    p.valu("v_and_b32", sw, 3, sw)
    p.valu("v_mul_u32_u24", a, 192, m32)
    p.valu("v_add_u32", a, a, pl)
    p.valu("v_lshl_add_u32", k.aY[0], sw, 4, a)
    p.valu("v_xor_b32", k.aY[1], 32, k.aY[0])
    p.add('valu', "v_cmp_gt_u32 s[68:69], 16, {}", [m32], rd=[m32], swr=['s68', 's69'])
    p.add('valu', "v_cmp_eq_u32 s[70:71], 16, {}", [m32], rd=[m32], swr=['s70', 's71'])
    e48 = T('e48')
    p.valu("v_mul_u32_u24", e48, 192, wv)
    p.valu("v_add_u32", e48, TAB - ENT, e48)
    for e in range(2):
        p.valu("v_add_u32", a, 32 * 192, k.aY[e])
        p.valu("v_cndmask_b32_e64", a, oob, a, "s[68:69]")
        p.valu("v_lshl_add_u32", b, hh, 4, e48)
        if e:
            p.valu("v_add_u32", b, 32, b)
        p.valu("v_cndmask_b32_e64", k.aY[2 + e], a, b, "s[70:71]")
    p.valu("v_cndmask_b32_e64", k.mskA[0], -1, 0, "s[70:71]")
    p.valu("v_mov_b32", a, ENT)
    p.valu("v_cndmask_b32_e64", k.cB[0], 0, a, "s[70:71]")
    rb, r48 = T('rb'), T('r48')
    p.valu("v_mul_u32_u24", rb, 192, wv)
    p.valu("v_add_u32", rb, 2 * BUFSZ + RTAB, rb)
    p.valu("v_lshlrev_b32", r48, 2, wv)
    p.valu("v_add_u32", r48, TAB - ENT + 768, r48)
    p.valu("v_lshl_add_u32", k.aRcol[0], m32, 2, rb)
    p.valu("v_add_u32", a, 128, k.aRcol[0])
    p.valu("v_cndmask_b32_e64", a, oob, a, "s[68:69]")
    p.valu("v_cndmask_b32_e64", k.aRcol[1], a, r48, "s[70:71]")
    p.valu("v_lshl_add_u32", k.aRrow[0], hh, 4, rb)
    p.add('valu', "v_cmp_eq_u32 s[68:69], 0, {}", [hh], rd=[hh], swr=['s68', 's69'])
    p.valu("v_cndmask_b32_e64", k.aR48[0], oob, r48, "s[68:69]")
    p.valu("v_mov_b32", a, f32(-1e30))
    p.valu("v_cndmask_b32_e64", k.neg[0], a, 0, "s[68:69]")
    p.valu("v_add_u32", k.aStg[0], pl, lin)
    p.valu("v_add_u32", a, e48, lin)
    p.add('valu', "v_cmp_gt_u32 s[68:69], 12, {}", [lane], rd=[lane], swr=['s68', 's69'])
    p.valu("v_cndmask_b32_e64", k.aStg48[0], oob, a, "s[68:69]")
    p.valu("v_lshrrev_b32", a, 4, m32)
    p.add('valu', "v_cmp_eq_u32 s[68:69], {}, {}", [a, hh], rd=[a, hh], swr=['s68', 's69'])
    p.valu("v_cndmask_b32_e64", q, 0, one_lo, "s[68:69]")
    p.valu("v_bfe_u32", a, m32, 2, 1)
    p.valu("v_bfe_u32", b, m32, 3, 1)
    p.valu("v_lshl_add_u32", a, a, 1, b)
    for i in range(4):
        p.add('valu', f"v_cmp_eq_u32 s[68:69], {i}, {{}}", [a], rd=[a], swr=['s68', 's69'])
        p.valu("v_cndmask_b32_e64", k.smfA[i], 0, q, "s[68:69]")
    p.valu("v_and_b32", b, 3, m32)
    p.valu("v_mul_u32_u24", k.smfI[0], "0x1111", b)
    p.valu("v_xor_b32", a, 1, b)
    p.valu("v_mul_u32_u24", a, "0x4444", a)
    p.valu("v_or_b32", k.smfI[0], k.smfI[0], a)
    mpos = T('mpos')
    p.valu("v_lshrrev_b32", a, 3, n16)
    p.valu("v_lshlrev_b32", a, 4, a)
    p.valu("v_and_b32", b, 7, n16)
    p.valu("v_add_u32", a, a, b)
    p.valu("v_and_b32", b, 1, g4)
    p.valu("v_lshl_add_u32", a, b, 3, a)
    p.valu("v_lshrrev_b32", b, 1, g4)
    p.valu("v_lshl_add_u32", a, b, 5, a)
    p.valu("v_lshlrev_b32", mpos, 4, a)
    p.valu("v_add_u32", k.aW[0], F_AT, mpos)
    wm, wb, com = T('wm'), T('wb'), T('com')
    p.valu("v_lshrrev_b32", a, 3, n16)
    p.valu("v_lshl_add_u32", com, a, 2, tt)
    p.valu("v_bfe_u32", q, n16, 2, 1)
    p.valu("v_and_b32", a, 1, g4)
    p.valu("v_lshrrev_b32", b, 1, g4)
    p.valu("v_lshl_add_u32", wm, a, 3, com)
    p.valu("v_lshl_add_u32", wm, b, 5, wm)
    p.valu("v_lshl_add_u32", wm, q, 6, wm)
    p.valu("v_lshl_add_u32", wb, a, 5, com)
    p.valu("v_lshl_add_u32", wb, q, 3, wb)
    p.valu("v_lshl_add_u32", wb, b, 6, wb)
    p.add('valu', "v_cmp_gt_u32 s[68:69], 2, {}", [wv], rd=[wv], swr=['s68', 's69'])
    aFw = T('aFw')
    p.valu("v_cndmask_b32_e64", aFw, wb, wm, "s[68:69]")
    p.valu("v_lshlrev_b32", aFw, 4, aFw)
    p.salu("s_mov_b32", sT2, F_AT)
    p.salu("s_cmp_eq_u32", None, sWAVE, 1)
    p.salu("s_cselect_b32", sT2, F_BT, sT2)
    p.salu("s_cmp_eq_u32", None, sWAVE, 2)
    p.salu("s_cselect_b32", sT2, F_AS, sT2)
    p.salu("s_cmp_eq_u32", None, sWAVE, 3)
    p.salu("s_cselect_b32", sT2, F_BS, sT2)
    p.valu("v_add_u32", aFw, sT2, aFw)
    atr = T('atr')
    p.valu("v_lshlrev_b32", a, 3, g4)
    p.valu("v_add_u32", a, a, ppx)
    p.valu("v_mul_u32_u24", a, 192, a)
    p.valu("v_lshl_add_u32", a, tt, 3, a)
    p.valu("v_add_u32", atr, sM0, a)
    kap_a, kap_b = math.sqrt(96) * math.log2(math.e), math.sqrt(96)
    p.salu("s_cmp_lg_u32", None, sT0, 0)
    p.salu("s_mov_b32", sKA, f32(kap_a))
    p.salu("s_cselect_b32", sKA, f32(kap_b), sKA)
    p.salu("s_cselect_b32", sKB, 0, f32(-kap_a / 96))
    R('wait', "s_waitcnt vmcnt(9)")
    R('branch', "s_cbranch_scc0 L_fold_d")
    for ct in range(6):
        for si in range(3):
            q0 = 72 + 4 * (3 * ct + si)
            for e in range(2):
                p.add('dsr', f"ds_read_b64_tr_b16 a[{q0 + 2 * e}:{q0 + 2 * e + 1}], {{}} offset:{(32 * si + 4 * e) * 192 + 32 * ct}", [atr], rd=[atr])
            if si == 2 and ct % 2:
                R('wait', "s_waitcnt lgkmcnt(0)")
    R('label', "L_fold_d:")
    D = [[p.v(f"D{kt}_{ct}", 4) for ct in range(6)] for kt in range(6)]
    for ct in range(6):
        for kt in range(6):
            for si in range(3):
                qa, qb = 4 * (3 * kt + si), 72 + 4 * (3 * ct + si)
                p.mfma('med', D[kt][ct].all, f"a[{qa}:{qa + 3}]", f"a[{qb}:{qb + 3}]", D[kt][ct].all if si else 0)
    pk = lambda op, d, *s, mods="": p.valu(op, d, *s, mods=mods)
    cs = [p.v(f"cs{ct}", 2) for ct in range(6)]
    c2 = p.v("c2", 2)
    for ct in range(6):
        pk("v_pk_add_f32", cs[ct].all, D[0][ct][0:2], D[0][ct][2:4])
        for kt in range(1, 6):
            pk("v_pk_add_f32", cs[ct].all, cs[ct].all, D[kt][ct][0:2])
            pk("v_pk_add_f32", cs[ct].all, cs[ct].all, D[kt][ct][2:4])
        p.valu("v_add_f32", cs[ct][0], cs[ct][0], cs[ct][1])
    for sw_ in (p.swap32, p.swap16):
        for ct in range(6):
            p.valu("v_mov_b32", cs[ct][1], cs[ct][0])
        for ct in range(6):
            sw_(cs[ct][0], cs[ct][1])
        for ct in range(6):
            p.valu("v_add_f32", cs[ct][0], cs[ct][0], cs[ct][1])
    for ct in range(6):
        p.valu("v_mul_f32", cs[ct][0], f32(-1.0 / 96), cs[ct][0])
    for ct in range(6):
        for kt in range(6):
            for h in range(2):
                pk("v_pk_add_f32", D[kt][ct][2 * h:2 * h + 2], D[kt][ct][2 * h:2 * h + 2], cs[ct].all, mods="op_sel_hi:[1,0]")
    rs = [p.v(f"rs{kt}", 4) for kt in range(6)]
    for kt in range(6):
        for h in range(2):
            pk("v_pk_add_f32", rs[kt][2 * h:2 * h + 2], D[kt][0][2 * h:2 * h + 2], D[kt][1][2 * h:2 * h + 2])
            for ct in range(2, 6):
                pk("v_pk_add_f32", rs[kt][2 * h:2 * h + 2], rs[kt][2 * h:2 * h + 2], D[kt][ct][2 * h:2 * h + 2])
    for rot in (8, 4, 2, 1):
        for kt in range(6):
            for r in range(4):
                p.valu("v_add_f32_dpp", rs[kt][r], rs[kt][r], rs[kt][r], dpp=True, mods=f"row_ror:{rot} row_mask:0xf bank_mask:0xf")
    p.valu("v_mov_b32", c2[0], sKA)
    p.valu("v_mov_b32", c2[1], sKB)
    for kt in range(6):
        for h in range(2):
            pk("v_pk_mul_f32", rs[kt][2 * h:2 * h + 2], rs[kt][2 * h:2 * h + 2], c2.all, mods="op_sel:[0,1] op_sel_hi:[1,1]")
    for s in range(3):
        for ct in range(6):
            o = p.v(f"fo{s}_{ct}", 4)
            for e in range(2):
                kt = 2 * s + e
                for h in range(2):
                    pk("v_pk_fma_f32", D[kt][ct][2 * h:2 * h + 2], D[kt][ct][2 * h:2 * h + 2], c2.all, rs[kt][2 * h:2 * h + 2],
                       mods="op_sel_hi:[1,0,1]")
                    p.valu("v_cvt_pk_bf16_f32", o[2 * e + h], D[kt][ct][2 * h], D[kt][ct][2 * h + 1])
            p.dsw(aFw, o.all, off=(ct >> 1) * 6144 + s * 2048 + (ct & 1) * 256)
    R('wait', "s_waitcnt lgkmcnt(0) vmcnt(0)")
    R('barrier', "s_barrier")
    a1, a2 = T('a1'), T('a2')
    p.valu("v_add_u32", a1, F_BT, mpos)
    p.valu("v_add_u32", a2, F_AS, lin)
    n = 0
    for m in range(6):
        for s in range(3):
            p.add('dsr', f"ds_read_b128 {aBT(m, s)}, {{}} offset:{medoff(m, s)}", [a1], rd=[a1])
            if 3 * m + s < 10:
                p.add('dsr', f"ds_read_b128 {aAT(m, s)}, {{}} offset:{medoff(m, s)}", [k.aW[0]], rd=[k.aW[0]])
    for m in range(3):
        for s in range(6):
            p.add('dsr', f"ds_read_b128 {aAS(m, s)}, {{}} offset:{bigoff(m, s)}", [a2], rd=[a2])
            p.add('dsr', f"ds_read_b128 {aBS(m, s)}, {{}} offset:{bigoff(m, s) + F_BS - F_AS}", [a2], rd=[a2])
    R('wait', "s_waitcnt lgkmcnt(0)")
    R('barrier', "s_barrier")
    p.salu("s_add_u32", sM0, sPL, BUFSZ)
    for i in range(9):
        p.salu("s_add_u32", "m0", sM0, 1024 * i)
        p.add('dma', "buffer_load_dwordx4 {}, " + SX + ", " + sB1 + " offen" + ldf + " lds", [k.goff[i]], rd=[k.goff[i]], srd=['m0', sB1])
    for t_, i in enumerate(p.ins):
        i.t = t_
    assert allocate(p.ins, p.blks, verbose=True)
    seq, _ = insert_waits(p.ins, hoist=False)
    seq, _ = fix_hazards(seq)
    return seq, lo, aT3


def gen_first(k, lo, aT3):
    p = Prog()
    p.blks += k.all + [lo, aT3]

    def xload(X, xs):
        L = []
        for s in range(3):
            L.append(p.add('vld', "buffer_load_dwordx4 {}, {}, " + SX + f", 0 offen offset:{64 * s}", [xs(3, s), lo[0]],
                           wr=[xs(3, s)], rd=[lo[0]], deadline=0))
        L += [p.dsr(xs(j, s), k.aT[j], off=64 * s) for j in range(3) for s in range(3)]
        return L
    t = gen_T(p, k, 4, xload, lambda j: k.aT[j] if j < 3 else aT3[0], True)
    for j in range(3):
        p.valu("v_add_u32", k.aT[j], BUFSZ, k.aT[j])
    a = p.v("a")[0]
    p.valu("v_add_u32", k.aRw[0], BUFSZ, k.aRw[0])
    p.valu("v_mov_b32", a, OOB)
    p.valu("v_cndmask_b32_e64", k.aRw[0], a, k.aRw[0], MRG[3])
    G, V, q1 = t['G'], t['V'], t['q1']
    G012 = [x for i, x in enumerate(G) if (i // 3) % 4 != 3]
    G3 = [x for i, x in enumerate(G) if (i // 3) % 4 == 3]
    bb = q1[:18] + G012 + q1[18:] + G3 + t['S'] + V[0] + V[1] + t['PV'][0] + V[2]
    bb += t['PV'][1] + t['q2'][0] + V[3] + t['PV'][2] + t['q2'][1] + t['PV'][3] + t['q2'][2] + t['q2'][3]
    order, total = schedule(p.ins, bb, verbose=True)
    assert allocate(order, p.blks, verbose=True)
    seq, _ = insert_waits(order)
    seq, n = fix_hazards(seq)
    print(f"  first: {len(seq)} instr, nops {n}, estimate {estimate(seq) * 4} cycles")
    return seq


def dump_sched(order):
    line = ""
    for i in order:
        if i.kind in MFMA:
            print(line)
            line = f"{i.t:5d} {i.part:2s} {i.kind} {i.wr[0][0].name:8s}|"
        else:
            nm = i.wr[0][0].name if i.wr else (i.rd[-1][0].name if i.rd else '')
            line += f" {i.fmt.split()[0].replace('v_', '').replace('_f32', '').replace('_b32', '')[:7]}:{nm}"
    print(line)


def finalize(order, parts, wrap=None):
    seq = [i for i in order if i.part in parts]
    seq, out = insert_waits(seq)
    return seq


def main(path):
    k = K()
    pro, lo, aT3 = gen_prologue(k)
    first = gen_first(k, lo, aT3)
    p, g = gen_body(k)
    p.blks += k.all
    bb = backbone_body(g)
    order, total = schedule(p.ins, bb, verbose=True, lookahead=OPT['lookahead'])
    if OPT['dump']:
        dump_sched(order)
    assert allocate(order, p.blks, verbose=2), "register allocation failed"
    tail = [Raw('salu', f"s_sub_u32 {sCNT}, {sCNT}, 1"), Raw('salu', f"s_cmp_lg_u32 {sCNT}, 0"),
            Raw('wait', "s_waitcnt vmcnt(0) lgkmcnt(0)"), Raw('barrier', "s_barrier"), Raw('branch', "s_cbranch_scc1 L_loop")]
    loop = finalize(order, ('C', 'Sb', 'D', 'A', 'T', 'Sa')) + tail
    loop, n = fix_hazards(loop, wrap=loop)
    print(f"  loop: {len(loop)} instr, nops {n}, estimate {estimate(loop) * 4} cycles")
    e0 = finalize(order, ('C', 'Sb', 'A', 'Sa')) + [Raw('wait', "s_waitcnt lgkmcnt(0)")]
    e0, n = fix_hazards(e0, wrap=loop)
    print(f"  e0: {len(e0)} instr, nops {n}, estimate {estimate(e0) * 4} cycles")
    e1 = finalize(order, ('Sb',))
    e1, n = fix_hazards(e1, wrap=e0)
    print(f"  e1: {len(e1)} instr, nops {n}, estimate {estimate(e1) * 4} cycles")
    L = []
    hdr = open(os.path.join(os.path.dirname(os.path.abspath(__file__)), "header.txt")).read().rstrip("\n")
    L.append(hdr)
    L.append(f"; @launch grid=({NWG},1,1) block=(256,1,1) lds={LDS_BYTES}")
    L.append(f""".amdgcn_target "amdgcn-amd-amdhsa--gfx950"
.text
.globl {NAME}_kernel
.p2align 8
.type {NAME}_kernel,@function
{NAME}_kernel:""")
    em = lambda seq: [L.append(("" if i.kind == 'label' else "    ") + i.text()) for i in seq]
    em(pro)
    em(first)
    L.append(f"    s_sub_u32 {sCNT}, {sNWIN}, 1")
    L.append("    s_waitcnt vmcnt(0) lgkmcnt(0)")
    L.append("    s_barrier")
    L.append("    s_nop 7")
    L.append(".p2align 6")
    L.append("L_loop:")
    em(loop)
    em(e0)
    em(e1)
    L.append("L_end:")
    L.append("    s_endpgm")
    L.append(f""".section .rodata,"a"
.p2align 6
.amdhsa_kernel {NAME}_kernel
  .amdhsa_next_free_vgpr 512
  .amdhsa_next_free_sgpr 96
  .amdhsa_accum_offset 256
  .amdhsa_group_segment_fixed_size 0
  .amdhsa_kernarg_size 64
  .amdhsa_user_sgpr_count 2
  .amdhsa_user_sgpr_kernarg_segment_ptr 1
  .amdhsa_system_sgpr_workgroup_id_x 1
.end_amdhsa_kernel""")
    open(path, "w").write("\n".join(L) + "\n")


if __name__ == "__main__":
    for a in sys.argv[2:]:
        kk, vv = a.split("=")
        OPT[kk] = type(OPT[kk])(int(vv))
    main(sys.argv[1] if len(sys.argv) > 1 else f"cdna_kernels/{NAME}.s")
```

```python
import random

PASSES = {'big': 8, 'med': 4}
MFMA = ('big', 'med')
VALU = ('valu', 'trans', 'swap')
MEM = ('dsr', 'dsw', 'dma', 'vst', 'vld')
SCALAR = ('salu', 'wait', 'nop', 'barrier', 'branch', 'label', 'smem')


class Blk:
    def __init__(self, name, size, persistent=False, carried=False, align=None, liveout=False):
        self.name, self.size = name, size
        self.liveout = liveout
        self.persistent, self.carried = persistent, carried
        self.align = align if align else (2 if size > 1 else 1)
        self.base = None

    def __getitem__(self, i):
        if isinstance(i, slice):
            a = i.start or 0
            b = self.size if i.stop is None else i.stop
            assert 0 <= a < b <= self.size, (self.name, a, b)
            return Reg(self, a, b - a)
        assert 0 <= i < self.size, (self.name, i)
        return Reg(self, i, 1)

    @property
    def all(self):
        return Reg(self, 0, self.size)

    def __repr__(self):
        return f"<{self.name}:{self.size}@{self.base}>"


class Reg:
    def __init__(self, blk, off, n):
        self.blk, self.off, self.n = blk, off, n

    def elems(self):
        return [(self.blk, self.off + i) for i in range(self.n)]

    def __getitem__(self, i):
        if isinstance(i, slice):
            a = i.start or 0
            b = self.n if i.stop is None else i.stop
            return Reg(self.blk, self.off + a, b - a)
        return Reg(self.blk, self.off + i, 1)

    def text(self):
        a = self.blk.base + self.off
        if self.n > 1:
            assert a % 2 == 0, (self.blk, self.off, self.n)
            return f"v[{a}:{a + self.n - 1}]"
        return f"v{a}"


class Multi:
    def __init__(self, blks):
        self.blks = blks
        self.c = blks[0].size

    def __getitem__(self, i):
        if isinstance(i, slice):
            a, b = i.start, i.stop
            assert a // self.c == (b - 1) // self.c
            return self.blks[a // self.c][a % self.c: a % self.c + (b - a)]
        return self.blks[i // self.c][i % self.c]


class Ins:
    _n = 0

    def __init__(self, kind, fmt, ops, wr, rd, swr=(), srd=(), part=None, after=(), dur=None, dpp=(), srcc=None,
                 release=None, deadline=None, acc=False):
        self.kind, self.fmt, self.ops = kind, fmt, ops
        self.wr = [e for r in wr for e in r.elems()]
        self.rd = [e for r in rd for e in r.elems()]
        self.swr, self.srd = list(swr), list(srd)
        self.part = part
        self.after = list(after)
        self.dpp = [e for r in dpp for e in r.elems()]
        self.srcc = srcc
        self.acc = acc
        self.release = release
        self.deadline = deadline
        if dur is None:
            dur = {'trans': 2, 'swap': 2, 'big': 2, 'med': 2, 'vst': 6}.get(kind, 1)
        self.dur = dur
        self.id = Ins._n
        Ins._n += 1
        self.t = None

    def text(self):
        return self.fmt.format(*[o.text() if isinstance(o, Reg) else o for o in self.ops])

    def __repr__(self):
        return f"<{self.kind} {self.fmt} #{self.id}>"


class Prog:
    def __init__(self):
        self.ins = []
        self.blks = []
        self.part = None

    def v(self, name, size=1, **kw):
        b = Blk(name, size, **kw)
        self.blks.append(b)
        return b

    def vm(self, name, n, chunk, **kw):
        return Multi([self.v(f"{name}", chunk, **kw) for i in range(n // chunk)])

    def add(self, kind, fmt, ops, wr=(), rd=(), **kw):
        kw.setdefault('part', self.part)
        i = Ins(kind, fmt, ops, wr, rd, **kw)
        self.ins.append(i)
        return i

    @staticmethod
    def _regs(xs):
        return [x for x in xs if isinstance(x, Reg)]

    @staticmethod
    def _sregs(xs):
        out = []
        for x in xs:
            if isinstance(x, str):
                y = x.lstrip('-')
                if y in ('vcc', 'm0', 'exec'):
                    out.append(y)
                elif y.startswith('s[') and y.endswith(']'):
                    a, b = y[2:-1].split(':')
                    out += [f"s{k}" for k in range(int(a), int(b) + 1)]
                elif y.startswith('s') and y[1:].isdigit():
                    out.append(y)
        return out

    def valu(self, op, d, *src, mods="", kind='valu', rmw=False, dpp=False, fmt=None, **kw):
        ops = [d] + list(src)
        if fmt is None:
            fmt = op + " " + ", ".join("{}" for _ in ops) + (" " + mods if mods else "")
        rd = self._regs(src) + ([d] if rmw else [])
        return self.add(kind, fmt, ops, wr=[d], rd=rd, srd=self._sregs(src), dpp=[src[0]] if dpp else [], **kw)

    def trans(self, op, d, s, **kw):
        return self.valu(op, d, s, kind='trans', **kw)

    def swap32(self, a, b, **kw):
        return self.add('swap', "v_permlane32_swap_b32 {}, {}", [a, b], wr=[a, b], rd=[a, b], dpp=[a, b], **kw)

    def swap16(self, a, b, **kw):
        return self.add('swap', "v_permlane16_swap_b32 {}, {}", [a, b], wr=[a, b], rd=[a, b], dpp=[a, b], **kw)

    def mfma(self, shape, d, a, b, c, **kw):
        op = {'big': "v_mfma_f32_32x32x16_bf16", 'med': "v_mfma_f32_16x16x32_bf16"}[shape]
        acc = isinstance(c, Reg) and c.blk is d.blk and c.off == d.off and c.n == d.n
        return self.add(shape, op + " {}, {}, {}, {}", [d, a, b, c], wr=[d], rd=self._regs([a, b, c]),
                        srcc=c if isinstance(c, Reg) else None, acc=acc, **kw)

    def smfmac(self, shape, d, a, b, idx, **kw):
        op = {'big': "v_smfmac_f32_32x32x32_bf16", 'med': "v_smfmac_f32_16x16x64_bf16"}[shape]
        return self.add(shape, op + " {}, {}, {}, {}", [d, a, b, idx], wr=[d], rd=self._regs([a, b, idx, d]),
                        srcc=d, acc=True, **kw)

    def dsr(self, d, addr, off=0, op=None, **kw):
        if op is None:
            n = d.n if isinstance(d, Reg) else 4
            op = {1: "ds_read_b32", 2: "ds_read_b64", 4: "ds_read_b128"}[n]
        assert 0 <= off < 65536
        return self.add('dsr', op + " {}, {}" + (f" offset:{off}" if off else ""), [d, addr],
                        wr=self._regs([d]), rd=[addr], **kw)

    def dsw(self, addr, s, off=0, **kw):
        op, dur = {1: ("ds_write_b32", 2), 2: ("ds_write_b64", 3), 4: ("ds_write_b128", 5)}[s.n]
        assert 0 <= off < 65536
        return self.add('dsw', op + " {}, {}" + (f" offset:{off}" if off else ""), [addr, s], rd=[addr, s], dur=dur, **kw)

    def salu(self, op, d, *src, scc_w=None, scc_r=False, **kw):
        ops = ([d] if d is not None else []) + list(src)
        fmt = op + " " + ", ".join("{}" for _ in ops)
        if scc_w is None:
            scc_w = not op.startswith(('s_mov', 's_mul', 's_cselect', 's_movk'))
        swr = self._sregs([d] if d is not None else []) + (['scc'] if scc_w else [])
        srd = self._sregs(src) + (['scc'] if scc_r or op.startswith(('s_cselect', 's_addc', 's_subb')) else [])
        return self.add('salu', fmt, ops, swr=swr, srd=srd, **kw)


def raw_latency(p, c, elems):
    if p.kind in MFMA:
        n = PASSES[p.kind] + 4
        if c.kind in MFMA and c.srcc is not None and set(elems) <= set(c.srcc.elems()):
            if c.acc and c.kind == p.kind and p.wr == c.wr:
                return 1
            return PASSES[p.kind] + 3
        return n + 1
    if p.kind in ('dsr',):
        return 34
    if p.kind == 'vld':
        return 300
    if p.kind in VALU:
        if c.kind in MFMA:
            return max(p.dur, 1) + 2
        if any(e in c.dpp for e in elems):
            return p.dur + 2
        if p.kind == 'trans' and c.kind != 'trans':
            return p.dur + 1
        return p.dur
    return 1


def build_deps(ins):
    lastw, readers = {}, {}
    preds = {i.id: {} for i in ins}
    byid = {i.id: i for i in ins}

    def edge(a, b, lat):
        if a is b:
            return
        d = preds[b.id]
        d[a.id] = max(d.get(a.id, 0), lat)

    for i in ins:
        rawby = {}
        for e in i.rd:
            if e in lastw:
                rawby.setdefault(lastw[e].id, []).append(e)
        for pid, el in rawby.items():
            edge(byid[pid], i, raw_latency(byid[pid], i, el))
        for e in i.srd:
            if e in lastw:
                p = lastw[e]
                lat = 1
                if e == 'm0' and i.kind == 'dma':
                    lat = 2
                edge(p, i, lat)
        for e in i.wr + i.swr:
            if e in lastw:
                p = lastw[e]
                lat = 1
                if p.kind in MFMA and i.kind not in MFMA:
                    lat = PASSES[p.kind] + 5
                if p.kind == 'dsr':
                    lat = 34
                edge(p, i, lat)
            for r in readers.get(e, []):
                lat = 1
                if r.kind in MFMA and r.srcc is not None and e in r.srcc.elems() and i.kind in VALU:
                    lat = PASSES[r.kind]
                if r.kind == 'vst':
                    lat = 3
                edge(r, i, lat)
        for a in i.after:
            if a.id in byid:
                edge(a, i, 1)
        for e in i.rd + i.srd:
            readers.setdefault(e, []).append(i)
        for e in i.wr + i.swr:
            lastw[e] = i
            readers[e] = []
    return preds


def occupancy(i):
    if i.kind == 'dsr':
        return 'lds', (4 if 'b128' in i.fmt else 2)
    if i.kind == 'dsw':
        return 'lds', {5: 13, 3: 6, 2: 4}[i.dur]
    if i.kind in ('dma', 'vld'):
        return 'vm', RES['vm_ld']
    if i.kind == 'vst':
        return 'vm', RES['vm_st']
    return None, 0


RES = dict(vm_ld=16, vm_st=20, q_lds=4, q_vm=0)


def schedule(ins, backbone, verbose=False, lookahead=48):
    byid = {i.id: i for i in ins}
    assert set(m.id for m in backbone) == set(i.id for i in ins if i.kind in MFMA), "backbone must list every MFMA"
    preds = build_deps(ins)
    succs = {i.id: [] for i in ins}
    for b, d in preds.items():
        for a, lat in d.items():
            succs[a].append((b, lat))
    ideal, t = {}, 0
    for m in backbone:
        ideal[m.id] = t
        t += PASSES[m.kind]
    tend = t
    dl = {}
    for i in reversed(ins):
        d = ideal[i.id] if i.kind in MFMA else tend + 40
        if i.deadline is not None:
            d = min(d, ideal[i.deadline.id] if isinstance(i.deadline, Ins) else i.deadline)
        if i.kind not in MFMA:
            for b, lat in succs[i.id]:
                d = min(d, dl[b] - max(lat, i.dur))
        dl[i.id] = d
    pos = {m.id: k for k, m in enumerate(backbone)}
    need = {}
    for i in ins:
        mx = -1
        for a in preds[i.id]:
            mx = max(mx, need[a], pos.get(a, -1))
        need[i.id] = mx
        if i.kind in MFMA:
            assert mx < pos[i.id], ("backbone order violates dependence", i, backbone[mx])
    npred = {i.id: len(preds[i.id]) for i in ins}
    est = {i.id: 0 for i in ins}
    ready = set(i.id for i in ins if npred[i.id] == 0 and i.kind not in MFMA)
    out = []
    t = 0
    pipe = 0
    k = 0
    free_scalar = False
    last_valu_end = -10
    late = 0
    stalls = []
    done = set()
    resfree = {'lds': -100, 'vm': -100}

    def commit(i, when):
        i.t = when
        r, o = occupancy(i)
        if r:
            resfree[r] = max(resfree[r], when) + o
        out.append(i)
        done.add(i.id)
        ready.discard(i.id)
        for b, lat in succs[i.id]:
            est[b] = max(est[b], when + lat)
            npred[b] -= 1
            if npred[b] == 0 and byid[b].kind not in MFMA:
                ready.add(b)

    def released(i):
        if i.release is not None and i.release.id in byid and i.release.id not in done:
            return False
        return True

    while len(out) < len(ins):
        m = backbone[k] if k < len(backbone) else None
        m_ok = m is not None and npred[m.id] == 0
        m_time = max(t, pipe, est[m.id]) if m_ok else None
        if free_scalar:
            free_scalar = False
            c = [byid[x] for x in ready if byid[x].kind in SCALAR and est[x] <= t - 1 and released(byid[x])
                 and byid[x].kind != 'barrier']
            if c:
                c.sort(key=lambda i: (dl[i.id], i.id))
                commit(c[0], t - 1)
                continue
        if m_ok and m_time <= t:
            late = t - ideal[m.id]
            if pipe < t and k > 0:
                stalls.append((k, t - pipe))
            commit(m, t)
            pipe = t + PASSES[m.kind]
            t += 2
            k += 1
            free_scalar = True
            continue
        cand = []
        for x in ready:
            i = byid[x]
            if est[x] > t or not released(i):
                continue
            pen = max(0, last_valu_end + 2 - t) if i.kind in MEM else 0
            d = dl[x] + late
            r, o = occupancy(i)
            if r and resfree[r] > t + pen + RES['q_' + r]:
                continue
            if i.kind in ('dsr', 'vld') and i.release is None and d - t > lookahead:
                continue
            cand.append((i, pen, d))
        horizon = m_time if m_ok else None
        best = None
        if cand:
            def key(c):
                i, pen, d = c
                fits = horizon is None or t + pen + i.dur <= horizon
                urgent = d <= t + 2
                mempref = 0 if (i.kind in MEM and pen == 0) else 1
                return (0 if (fits or urgent) else 1, 0 if pen == 0 or urgent else 1, mempref if d - t < 200 else 1, d, i.id)
            cand.sort(key=key)
            i, pen, d = cand[0]
            fits = horizon is None or t + pen + i.dur <= horizon
            if fits or d <= t + 2:
                if not (pen > 0 and d > t + 6 and horizon is not None):
                    best = (i, pen)
        if best is None:
            t += 1
            if t > 100000:
                raise RuntimeError("scheduler stuck: " + repr([byid[x] for x in ready][:5]) + repr(m))
            continue
        i, pen = best
        commit(i, t + pen)
        t += pen + i.dur
        if i.kind in VALU:
            last_valu_end = t
    total = max(t, pipe)
    if verbose:
        print(f"schedule: {len(ins)} instr, ideal pipe {tend} slots, scheduled {total} slots ({total * 4} cycles)")
        agg = {}
        for kk, s in stalls:
            agg[kk // 10 * 10] = agg.get(kk // 10 * 10, 0) + s
        print("  pipe idle by backbone index:", agg)
    return out, total


def live_ranges(order, blks):
    n = len(order)
    times = [i.t for i in order]

    def idx_after(k, dt):
        j = k
        while j + 1 < n and times[j + 1] < times[k] + dt:
            j += 1
        return j
    ev = {}
    for k, i in enumerate(order):
        for e in i.rd:
            end = k
            if i.kind == 'vst':
                end = min(n - 1, k + 2)
            if i.kind in MFMA and i.srcc is not None and e in i.srcc.elems():
                end = idx_after(k, PASSES[i.kind] + 1)
            ev.setdefault(e, []).append(('r', k, end))
        for e in i.wr:
            end = k
            if i.kind in MFMA:
                end = idx_after(k, PASSES[i.kind] + 6)
            ev.setdefault(e, []).append(('w', k, end))
    rng = {}
    for b in blks:
        for x in range(b.size):
            e = (b, x)
            if b.persistent:
                rng[e] = [(-1, n + 1)]
                continue
            L = ev.get(e, [])
            iv = []
            cur = None
            for typ, k, end in L:
                if typ == 'r':
                    if cur is None:
                        assert b.carried, ("read before write", b, x, order[k])
                        cur = [-1, end]
                    cur[1] = max(cur[1], end)
                else:
                    if cur is not None and cur[1] < k:
                        iv.append(tuple(cur))
                        cur = None
                    if cur is None:
                        cur = [k, end]
                    cur[1] = max(cur[1], end)
            if cur is not None:
                if (b.carried and L and L[0][0] == 'r' and any(x[0] == 'w' for x in L)) or b.liveout:
                    cur[1] = n + 1
                iv.append(tuple(cur))
            rng[e] = iv
    return rng


def allocate(order, blks, nregs=256, tries=400, seed=0, verbose=False):
    rng = live_ranges(order, blks)
    n = len(order)
    press = [0] * (n + 3)
    for e, iv in rng.items():
        for a, b in iv:
            for k in range(max(a, 0), min(b, n - 1) + 1):
                press[k] += 1
    if verbose:
        mx = max(press)
        at = press.index(mx)
        print(f"  max live registers {mx} at index {at} of {n} (t={order[at].t})")
        if verbose > 1:
            d = {}
            for e, iv in rng.items():
                if any(a <= at <= b for a, b in iv):
                    d[e[0].name] = d.get(e[0].name, 0) + 1
            print("   ", d)
            print("    pressure profile:", [(order[x].t, press[x]) for x in range(0, n, max(1, n // 40))])
    rnd = random.Random(seed)
    free = [b for b in blks if b.base is None]
    fixed = [b for b in blks if b.base is not None]

    def mask(iv):
        m = 0
        for a, b in iv:
            lo, hi = 2 * (a + 1) + 1, 2 * (b + 1) + 1
            if a == b:
                hi = lo + 1
            m |= ((1 << (hi - lo)) - 1) << lo
        return m
    masks = {e: mask(iv) for e, iv in rng.items()}
    for k, i in enumerate(order):
        if i.kind in MFMA or i.kind in ('dsr', 'vld'):
            bit = 1 << (2 * (k + 1))
            for e in i.wr + i.rd:
                masks[e] |= bit
    weight = {b: sum(bin(masks[(b, x)]).count('1') for x in range(b.size)) for b in free}
    best = None
    for tr in range(tries):
        if tr == 0:
            seq = sorted(free, key=lambda b: (-b.size, -weight[b]))
        elif tr == 1:
            seq = sorted(free, key=lambda b: -weight[b])
        elif tr % 2 == 0:
            seq = sorted(free, key=lambda b: (-b.size, -weight[b] * (0.5 + rnd.random())))
        else:
            seq = sorted(free, key=lambda b: -(weight[b] * (0.3 + rnd.random()) + b.size * n * 0.5 * rnd.random()))
        occ = [0] * nregs
        for b in fixed:
            for x in range(b.size):
                occ[b.base + x] |= masks[(b, x)]
        ok = True
        place = {}
        for b in seq:
            found = None
            for base in range(0, nregs - b.size + 1, b.align):
                if all((occ[base + x] & masks[(b, x)]) == 0 for x in range(b.size)):
                    found = base
                    break
            if found is None:
                ok = False
                break
            place[b] = found
            for x in range(b.size):
                occ[found + x] |= masks[(b, x)]
        if ok:
            best = place
            break
    if best is None:
        return False
    for b, base in best.items():
        b.base = base
    if verbose:
        print(f"  allocated after {tr + 1} tries, highest register v{max(b.base + b.size for b in blks) - 1}")
    return True


def phys(e):
    return e[0].base + e[1]


class Raw(Ins):
    def __init__(self, kind, text, n=1):
        super().__init__(kind, text.replace("{", "{{").replace("}", "}}"), [], [], [])
        self.n = n


def required_states(p, c):
    pw = set(phys(e) for e in p.wr)
    cr = set(phys(e) for e in c.rd)
    cw = set(phys(e) for e in c.wr)
    need = 0
    if p.kind in MFMA:
        n = PASSES[p.kind]
        if c.kind in MFMA:
            cc = set(phys(e) for e in c.srcc.elems()) if c.srcc is not None else set()
            if pw & cc:
                same = c.kind == p.kind and cc == pw
                if not same:
                    need = max(need, n + 2)
            ab = set()
            for o in c.ops[1:4]:
                if isinstance(o, Reg) and o is not c.srcc:
                    ab |= set(phys(e) for e in o.elems())
            if pw & ab:
                need = max(need, n + 4)
        elif c.kind in VALU or c.kind in MEM:
            if pw & (cr | cw):
                need = max(need, n + 4)
            if p.srcc is not None and c.kind in VALU and set(phys(e) for e in p.srcc.elems()) & cw:
                need = max(need, n - 1)
    elif p.kind in VALU:
        if c.kind in MFMA and pw & cr:
            need = max(need, 2)
        if c.kind in VALU and pw & set(phys(e) for e in c.dpp):
            need = max(need, 2)
        if p.kind == 'trans' and c.kind in VALU and c.kind != 'trans' and pw & cr:
            need = max(need, 1)
        sw = set(p.swr)
        if sw & set(c.srd):
            if c.kind in VALU:
                need = max(need, 2)
            if c.kind in MEM:
                need = max(need, 5)
        if 'readlane' in c.fmt or 'readfirstlane' in c.fmt:
            if pw & cr:
                need = max(need, 1)
    elif p.kind == 'vst':
        pr = set(phys(e) for e in p.rd)
        if pr & cw:
            need = max(need, 2 if c.kind in VALU else 1)
    elif p.kind == 'salu':
        if 'm0' in p.swr and c.kind == 'dma':
            need = max(need, 1)
    return need


def fix_hazards(seq, wrap=None):
    pre = list(wrap[-40:]) if wrap else []
    out = list(pre)
    added = 0
    for c in seq:
        lo = max(0, len(out) - 40)
        worst = 0
        for a in range(len(out) - 1, lo - 1, -1):
            p = out[a]
            need = required_states(p, c)
            if need == 0:
                continue
            t = 0
            lastm_t, lastm_p = (0, PASSES[p.kind]) if p.kind in MFMA else (None, None)
            prev = p
            for q in out[a + 1:] + [c]:
                if q.kind == 'label':
                    continue
                t += getattr(prev, 'n', 1) if prev.kind == 'nop' else 1
                if q.kind in MFMA:
                    if lastm_t is not None:
                        t = max(t, lastm_t + lastm_p)
                    lastm_t, lastm_p = t, PASSES[q.kind]
                prev = q
            have = t - 1
            if have < need:
                tp = 0
                lm_t, lm_p = (0, PASSES[p.kind]) if p.kind in MFMA else (None, None)
                prev = p
                for q in out[a + 1:]:
                    if q.kind == 'label':
                        continue
                    tp += getattr(prev, 'n', 1) if prev.kind == 'nop' else 1
                    if q.kind in MFMA:
                        if lm_t is not None:
                            tp = max(tp, lm_t + lm_p)
                        lm_t, lm_p = tp, PASSES[q.kind]
                    prev = q
                tp += getattr(prev, 'n', 1) if prev.kind == 'nop' else 1
                worst = max(worst, need + 1 - tp)
        while worst > 0:
            k = min(worst, 16)
            out.append(Raw('nop', f"s_nop {k - 1}", n=k))
            added += k
            worst -= k
        out.append(c)
    return out[len(pre):], added


def insert_waits(seq, carried_lgkm=(), hoist=True):
    out = []
    lg = list(carried_lgkm)
    vm = []
    for c in seq:
        touched = set(phys(e) for e in c.rd) | set(phys(e) for e in c.wr)
        for q, name in ((lg, 'lgkmcnt'), (vm, 'vmcnt')):
            need = -1
            for k, p in enumerate(q):
                if p.kind in ('dsr', 'vld') and touched & set(phys(e) for e in p.wr):
                    need = k
                if p in getattr(c, 'wait_for', ()):
                    need = k
            if need >= 0:
                n = len(q) - need - 1
                assert n <= (15 if name == 'lgkmcnt' else 63), "counter overflow"
                w = Raw('wait', f"s_waitcnt {name}({n})")
                w.t = c.t
                at = len(out)
                if hoist and name == 'lgkmcnt' and q[need].t is not None:
                    j = len(out) - 1
                    while j >= 0 and out[j].kind not in ('dsr', 'dsw', 'smem', 'wait', 'barrier', 'label', 'branch'):
                        if out[j].kind in MFMA and out[j].t is not None and out[j].t >= q[need].t + 30:
                            if j + 1 >= len(out) or out[j + 1].kind not in SCALAR:
                                at = j + 1
                                break
                        if out[j].t is not None and out[j].t < q[need].t + 30:
                            break
                        j -= 1
                out.insert(at, w)
                del q[:need + 1]
        if c.kind == 'wait':
            txt = c.text()
            for q, name in ((lg, 'lgkmcnt'), (vm, 'vmcnt')):
                if name + "(" in txt:
                    n = int(txt.split(name + "(")[1].split(")")[0])
                    if len(q) > n:
                        del q[:len(q) - n]
        if c.kind in ('dsr', 'dsw'):
            lg.append(c)
            if len(lg) > 15:
                w = Raw('wait', "s_waitcnt lgkmcnt(14)")
                w.t = c.t
                out.append(w)
                del lg[:len(lg) - 15]
        if c.kind in ('vld', 'vst', 'dma'):
            vm.append(c)
        out.append(c)
    return out, lg


def estimate(seq):
    t = pipe = 0
    free = False
    lastv = -10
    for c in seq:
        if c.kind == 'label':
            continue
        if c.kind in MFMA:
            t = max(t, pipe)
            pipe = t + PASSES[c.kind]
            t += 2
            free = True
            continue
        if c.kind in SCALAR:
            n = getattr(c, 'n', 1) if c.kind == 'nop' else 1
            t += n - (1 if free else 0)
            free = False
            continue
        free = False
        if c.kind in MEM:
            t = max(t, lastv + 2)
        t += c.dur
        if c.kind in VALU:
            lastv = t
    return max(t, pipe)
```

```python
import sys, struct, math, os
sys.path.insert(0, os.path.dirname(os.path.abspath(__file__)))
from ir import *

NAME = "standalone__video_video_swin__vision"
NBYTES = 109734912
TS, RS = 27433728, 72576
NWIN = 2916
NWG = int(os.environ.get('NWG', 243))
PLANE = 9216
BUFSZ = 37632
RTAB = 36864
NBUF = 4
TAB = NBUF * BUFSZ + 784
ENT = 784
F_AT = 2 * BUFSZ
F_BT, F_AS, F_BS = F_AT + 18432, F_AT + 2 * 18432, F_AT + 3 * 18432
WO_T, WO_S = F_BT, F_BS
SPILL = TAB + 12 * ENT
LDS_BYTES = SPILL + 3072
OOB = 0x40000000
C96 = 96 * 1e-5


def f32(x):
    return "0x%08x" % struct.unpack("<I", struct.pack("<f", x))[0]


OPT = dict(ld_nt=True, st_nt=True, lookahead=48, dump=0, reload=3, stamp=0, pf=1, spread=1, d0=400, dd=130)

SX, SO, SW, SW2 = "s[4:7]", "s[8:11]", "s[12:15]", "s[16:19]"
sWAVE, sNWIN, sCNT, sWID = "s20", "s21", "s22", "s23"
sB2, sB1, sB0, sBM, sB3 = "s24", "s25", "s26", "s27", "s51"
sO0, sO1, sO2, sO3 = "s28", "s29", "s30", "s53"
sDT, sDS, sPL = "s31", "s42", "s43"
SEL = [None, "s[32:33]", "s[34:35]", "s[36:37]"]
MRG = [None, "s[38:39]", "s[40:41]", "s[44:45]"]
sT0, sT1, sT2, sT3 = "s46", "s47", "s48", "s49"
sM0 = "s50"
sKA, sKB = "s52", "s54"


def aBT(m, s): k = 4 * (3 * m + s); return f"a[{k}:{k + 3}]"
def aAT(m, s): k = 72 + 4 * (3 * m + s); assert k < 112; return f"a[{k}:{k + 3}]"
def aAS(m, s): k = 112 + 4 * (6 * m + s); return f"a[{k}:{k + 3}]"
def aBS(m, s): k = 184 + 4 * (6 * m + s); return f"a[{k}:{k + 3}]"
def medoff(m, s): return (m >> 1) * 6144 + s * 2048 + (m & 1) * 1024
def bigoff(m, s): return (6 * m + s) * 1024


class K:
    def __init__(self):
        mk = lambda n, s=1: Blk(n, s, persistent=True)
        self.goff = mk('goff', 10)
        self.aT = mk('aT', 3)
        self.aRw = mk('aRw')
        self.aY = mk('aY', 4)
        self.aStg = mk('aStg')
        self.aStg48 = mk('aStg48')
        self.aRrow = mk('aRrow')
        self.aR48 = mk('aR48')
        self.aRcol = mk('aRcol', 2)
        self.WV = mk('WV', 20)
        self.aW = mk('aW')
        self.mskA = mk('mskA')
        self.cB = mk('cB')
        self.ones = mk('ones', 4)
        self.idm = mk('idm', 2)
        self.diag = mk('diag')
        self.neg = mk('neg')
        self.smfA = mk('smfA', 4)
        self.smfI = mk('smfI')
        self.V3 = mk('V3', 10)
        self.all = [self.WV, self.V3, self.goff, self.ones, self.smfA, self.aY, self.idm, self.aRcol, self.aT, self.aRw, self.aStg,
                    self.aStg48, self.aRrow, self.aR48, self.aW, self.mskA, self.cB, self.diag, self.neg, self.smfI]
        top = 256
        for b in self.all:
            top -= b.size
            if b.size > 1 and top % 2:
                top -= 1
            b.base = top
        self.low = top
        if OPT['stamp']:
            z = mk('v0')
            z.base = 0
            self.all.append(z)


def merge(p, k, vals, name):
    nt = len(vals)
    out = []
    res = [p.v(f"{name}{i}")[0] for i in range(len(vals[0]))]
    cur = list(vals[0])
    for j in range(1, nt):
        p.salu("s_mov_b64", "vcc", MRG[j])
        for i in range(len(cur)):
            p.valu("v_cndmask_b32_dpp", res[i], vals[j][i], cur[i], "vcc", dpp=True,
                   mods=f"row_ror:{4 * j} row_mask:0xf bank_mask:0xf")
            cur[i] = res[i]
    return cur


def ln_finish(p, k, Q, SUM, name):
    nt = len(Q)
    sel = []
    for j in range(nt):
        d = p.v(f"{name}d{j}")[0]
        p.valu("v_cndmask_b32_e64", d, Q[j][0], Q[j][1], SEL[1])
        p.valu("v_cndmask_b32_e64", d, d, Q[j][2], SEL[2])
        p.valu("v_cndmask_b32_e64", d, d, Q[j][3], SEL[3])
        sel.append([d, SUM[j][0]])
    q, s = merge(p, k, sel, name + "m")
    t = p.v(name + "t")[0]
    p.valu("v_mul_f32", t, s, s)
    p.valu("v_fmamk_f32", t, t, f32(-1.0 / 96), q)
    p.valu("v_max_f32", t, 0, t)
    p.valu("v_add_f32", t, f32(C96), t)
    r = p.v(name + "r")[0]
    p.trans("v_rsq_f32", r, t)
    return r


def gen_T(p, k, nt, xload, aTx, stream_w):
    g = {n: [] for n in ('q1', 'G', 'S', 'V', 'PV', 'q2')}
    X = [p.v(f"X{j}", 20) for j in range(nt)]
    xs = lambda j, s: X[j][2 + 6 * s: 6 + 6 * s]
    g['xld'] = xload(X, xs)
    Q = [p.v(f"Q{j}", 4) for j in range(nt)]
    SUM = [p.v(f"SUM{j}", 4) for j in range(nt)]
    for j in range(nt):
        for s in range(3):
            g['q1'].append(p.mfma('med', Q[j].all, xs(j, s), xs(j, s), Q[j].all if s else 0))
        for s in range(3):
            g['q1'].append(p.mfma('med', SUM[j].all, k.ones.all, xs(j, s), SUM[j].all if s else 0))
    r1 = ln_finish(p, k, Q, SUM, "l1")
    GP = [p.vm(f"GP{j}", 12, 4) for j in range(nt)]
    for m in range(6):
        W = []
        for s in range(3):
            if 3 * m + s < 10:
                W.append(aAT(m, s))
            else:
                q = 4 * (3 * m + s - 10)
                if q < 20:
                    W.append(k.WV[q:q + 4])
                else:
                    w = p.v(f"WS{m}_{s}", 4)
                    p.dsr(w.all, k.aW[0], off=256 * (q - 20))
                    W.append(w.all)
        for j in range(nt):
            acc = p.v(f"GA{j}_{m}", 4)
            for s in range(3):
                g['G'].append(p.mfma('med', acc.all, W[s], xs(j, s), acc.all if s else 0))
            p.valu("v_cvt_pk_bf16_f32", GP[j][2 * m], acc[0], acc[1])
            p.valu("v_cvt_pk_bf16_f32", GP[j][2 * m + 1], acc[2], acc[3])
    ST = [p.v(f"ST{j}", 4) for j in range(nt)]
    for j in range(nt):
        for s in range(3):
            g['S'].append(p.mfma('med', ST[j].all, xs(j, s), GP[j][4 * s:4 * s + 4], ST[j].all if s else 0))
    VI = [p.vm(f"VI{j}", 18, 6) for j in range(nt)]
    vslot = lambda j, m: VI[j][6 * (m >> 1) + 4 * (m & 1): 6 * (m >> 1) + 4 * (m & 1) + 2]
    g['idmov'] = []
    for j in range(nt):
        grp = []
        for m in range(6):
            acc = p.v(f"VA{j}_{m}", 4)
            for s in range(3):
                grp.append(p.mfma('med', acc.all, xs(j, s), aBT(m, s), acc.all if s else 0))
            p.valu("v_cvt_pk_bf16_f32", vslot(j, m)[0], acc[0], acc[1])
            p.valu("v_cvt_pk_bf16_f32", vslot(j, m)[1], acc[2], acc[3])
        g['V'].append(grp)
        for s in range(3):
            for e in range(2):
                g['idmov'].append(p.valu("v_mov_b32", VI[j][6 * s + 2 + e], k.idm[e], release=grp[0]))
    S = merge(p, k, [[ST[j][r] for r in range(4)] for j in range(nt)], "Sm")
    T4 = p.vm("T4", 4, 1)
    for r in range(4):
        p.valu("v_mul_f32_dpp", T4[r], r1, S[r], dpp=True, mods=f"quad_perm:[{r},{r},{r},{r}] row_mask:0xf bank_mask:0xf")
    mx = p.v("tmx")[0]
    p.valu("v_max3_f32", mx, T4[0], T4[1], T4[2])
    p.valu("v_max_f32", mx, mx, T4[3])
    p.valu("v_mul_f32_e64", mx, mx, r1, fmt="v_mul_f32_e64 {}, -{}, {}")
    for r in range(4):
        p.valu("v_fma_f32", T4[r], T4[r], r1, mx)
    for r in range(4):
        p.trans("v_exp_f32", T4[r], T4[r])
    l0, l1 = p.v("tl0")[0], p.v("tl1")[0]
    p.valu("v_add_f32", l0, T4[0], T4[1])
    p.valu("v_add_f32", l1, T4[2], T4[3])
    p.valu("v_add_f32", l0, l0, l1)
    p.trans("v_rcp_f32", l0, l0)
    for r in range(4):
        p.valu("v_mul_f32_dpp", T4[r], r1, T4[r], dpp=True, mods=f"quad_perm:[{r},{r},{r},{r}] row_mask:0xf bank_mask:0xf")
    for r in range(4):
        p.valu("v_mul_f32", T4[r], T4[r], l0)
    PM = p.vm("PM", 2, 1)
    p.valu("v_cvt_pk_bf16_f32", PM[0], T4[0], T4[1])
    p.valu("v_cvt_pk_bf16_f32", PM[1], T4[2], T4[3])
    YP = [p.vm(f"YP{j}", 12, 4) for j in range(nt)]
    Q2 = [p.v(f"Q2{j}", 4) for j in range(nt)]
    SUM2 = [p.v(f"SUM2{j}", 4) for j in range(nt)]
    g['ywr'] = []
    for j in range(nt):
        for c in range(4):
            for e in range(2):
                if j == 0:
                    p.valu("v_and_b32", X[j][6 * c + e], PM[e], k.diag[0])
                else:
                    p.valu("v_and_b32_dpp", X[j][6 * c + e], PM[e], k.diag[0], dpp=True, release=g['V'][j][6],
                           mods=f"row_ror:{16 - 4 * j} row_mask:0xf bank_mask:0xf")
        pv, q2 = [], []
        for m in range(6):
            s, e = m >> 1, m & 1
            acc = p.v(f"OA{j}_{m}", 4)
            a = VI[j][6 * s + 2 * e: 6 * s + 2 * e + 4]
            b = X[j][6 * s + 4 * e: 6 * s + 4 * e + 4]
            pv.append(p.mfma('med', acc.all, a, b, 0))
            p.valu("v_cvt_pk_bf16_f32", YP[j][2 * m], acc[0], acc[1])
            p.valu("v_cvt_pk_bf16_f32", YP[j][2 * m + 1], acc[2], acc[3])
        for s in range(3):
            g['ywr'].append(p.dsw(aTx(j), YP[j][4 * s:4 * s + 4], off=64 * s))
        for s in range(3):
            q2.append(p.mfma('med', Q2[j].all, YP[j][4 * s:4 * s + 4], YP[j][4 * s:4 * s + 4], Q2[j].all if s else 0))
        for s in range(3):
            q2.append(p.mfma('med', SUM2[j].all, k.ones.all, YP[j][4 * s:4 * s + 4], SUM2[j].all if s else 0))
        g['PV'].append(pv)
        g['q2'].append(q2)
    r2 = ln_finish(p, k, Q2, SUM2, "l2")
    g['ywr'].append(p.dsw(k.aRw[0], r2))
    return g


def softmax_S(p, k, u, S0, S1, RK, RK48, rq, P):
    el = [S0[i] for i in range(16)] + [S1[i] for i in range(9)]
    rk = [RK[i] for i in range(24)] + [RK48]
    for i in range(24):
        p.valu("v_mul_f32", el[i], el[i], rk[i])
    p.valu("v_fma_f32", el[24], el[24], rk[24], k.neg[0])
    m0, m1 = p.v(f"mxa{u}")[0], p.v(f"mxb{u}")[0]
    p.valu("v_max3_f32", m0, el[0], el[1], el[2])
    p.valu("v_max3_f32", m1, el[3], el[4], el[5])
    for i in range(6, 24, 4):
        p.valu("v_max3_f32", m0, m0, el[i], el[i + 1])
        if i + 3 < 25:
            p.valu("v_max3_f32", m1, m1, el[i + 2], el[i + 3])
    p.valu("v_max3_f32", m0, m0, m1, el[24])
    p.valu("v_mov_b32", m1, m0)
    p.swap32(m0, m1)
    p.valu("v_max_f32", m0, m0, m1)
    p.valu("v_mul_f32_e64", m0, m0, rq, fmt="v_mul_f32_e64 {}, -{}, {}")
    for i in range(25):
        p.valu("v_fma_f32", el[i], el[i], rq, m0)
        p.trans("v_exp_f32", el[i], el[i])
    l0, l1 = p.v(f"la{u}")[0], p.v(f"lb{u}")[0]
    p.valu("v_add_f32", l0, el[0], el[1])
    p.valu("v_add_f32", l1, el[2], el[3])
    for i in range(4, 25):
        d = l0 if i % 2 == 0 else l1
        p.valu("v_add_f32", d, d, el[i])
    p.valu("v_add_f32", l0, l0, l1)
    p.valu("v_mov_b32", l1, l0)
    p.swap32(l0, l1)
    p.valu("v_add_f32", l0, l0, l1)
    p.trans("v_rcp_f32", l0, l0)
    for i in range(25):
        p.valu("v_mul_f32", el[i], el[i], rk[i])
    for i in range(25):
        p.valu("v_mul_f32", el[i], el[i], l0)
        if i % 2 == 1:
            p.valu("v_cvt_pk_bf16_f32", P[i >> 1], el[i - 1], el[i])
    return el[24]


def gen_PV(p, k, u, Y, VP, P, aYe, aYo):
    mf, wr = [], []
    for m in range(3):
        acc = p.v(f"O{u}_{m}", 16)
        for ks in range(3):
            mf.append(p.mfma('big', acc.all, VP[m][4 * ks:4 * ks + 4], P[4 * ks:4 * ks + 4], acc.all if ks else 0))
        mf.append(p.mfma('big', acc.all, k.V3[2 * m:2 * m + 4], k.V3[6:10], acc.all))
        mf.append(p.smfmac('big', acc.all, k.smfA.all, Y[8 * m:8 * m + 8], k.smfI[0]))
        for h in range(2):
            o = p.v(f"OP{u}_{m}_{h}", 4)
            for i in range(4):
                p.valu("v_cvt_pk_bf16_f32", o[i], acc[8 * h + 2 * i], acc[8 * h + 2 * i + 1])
            wr.append(p.dsw(aYo if h else aYe, o.all, off=64 * m))
    return mf, wr


def gen_body(k):
    p = Prog()
    g = {}
    ldf = " nt" if OPT['ld_nt'] else ""
    stf = " nt" if OPT['st_nt'] else ""
    Y1 = p.vm("Y1", 24, 8, carried=True)
    P1 = p.vm("P1", 12, 4, carried=True)
    VP = [p.vm(f"VP{m}", 12, 4, carried=True) for m in range(3)]
    p.part = 'C'
    p.salu("s_sub_u32", sDS, sO1, sO0)
    p.salu("s_sub_u32", sDT, sO3, sO2)
    p.salu("s_add_u32", sM0, sO0, sPL)
    p.part = 'Sb'
    g['PV1'], wr1 = gen_PV(p, k, 1, Y1, VP, P1, k.aY[2], k.aY[3])
    g['wr1'] = wr1
    st, sr = [], []
    for i in range(10):
        d = p.v(f"STG{i}", 4)
        if i < 9:
            r = p.dsr(d.all, k.aStg[0], off=1024 * i, after=wr1 if i >= 6 else [])
        else:
            r = p.dsr(d.all, k.aStg48[0], after=wr1)
        sr.append(r)
        s = p.add('vst', "buffer_store_dwordx4 {}, {}, " + SO + ", " + sBM + " offen" + stf, [d.all, k.goff[i]],
                  rd=[d.all, k.goff[i]], srd=[sBM, 's10'], after=st[-1:])
        st.append(s)
    g['st'], g['sr'] = st, sr
    p.part = 'D'
    dm = []
    for i in range(9):
        p.salu("s_add_u32", "m0", sM0, 1024 * i)
        dm.append(p.add('dma', "buffer_load_dwordx4 {}, " + SX + ", " + sB3 + " offen" + ldf + " lds", [k.goff[i]],
                        rd=[k.goff[i]], srd=['m0', sB3, 's6'], after=[st[i]] + dm[-1:]))
    g['dma'] = dm
    p.part = 'A'
    dv = p.v("dv")[0]
    p.valu("v_and_b32", dv, sDS, k.mskA[0])
    p.valu("v_add_u32", k.aY[0], sDS, k.aY[0])
    p.valu("v_add_u32", k.aY[1], sDS, k.aY[1])
    p.valu("v_add3_u32", k.aY[2], k.aY[2], dv, k.cB[0])
    p.valu("v_add3_u32", k.aY[3], k.aY[3], dv, k.cB[0])
    p.valu("v_add3_u32", k.aRcol[1], k.aRcol[1], dv, k.cB[0])
    p.valu("v_add_u32", k.aRcol[0], sDS, k.aRcol[0])
    p.valu("v_add_u32", k.aRrow[0], sDS, k.aRrow[0])
    p.valu("v_add_u32", k.aStg[0], sDS, k.aStg[0])
    p.valu("v_add_u32", k.aR48[0], ENT, k.aR48[0])
    p.valu("v_add_u32", k.aStg48[0], ENT, k.aStg48[0])
    p.part = 'Sa'
    yload = lambda Yb, u: [p.dsr(Yb[4 * s:4 * s + 4], k.aY[2 * u + (s & 1)], off=64 * (s >> 1)) for s in range(6)]
    Y0 = p.vm("Y0", 24, 8)
    Yb = [Y0, Y1]
    Ya = [p.vm("Ya0", 24, 4) if OPT['reload'] & 1 else Y0, p.vm("Ya1", 24, 4) if OPT['reload'] & 2 else Y1]
    g['ya0'], g['ya1'] = yload(Ya[0], 0), yload(Ya[1], 1)
    RK = p.vm("RK", 24, 4)
    RK48 = p.v("RK48")[0]
    RQ = p.vm("RQ", 2, 1)
    g['rk'] = [p.dsr(RK[4 * a:4 * a + 4], k.aRrow[0], off=32 * a) for a in range(6)]
    g['rk'] += [p.dsr(RK48, k.aR48[0]), p.dsr(RQ[0], k.aRcol[0])]
    g['rq1'] = [p.dsr(RQ[1], k.aRcol[1])]
    SS = []
    for u in range(2):
        Y = Ya if u == 0 else Yb
        if u == 1:
            g['yb0'] = yload(Y0, 0) if OPT['reload'] & 1 else []
            g['yb1'] = yload(Y1, 1) if OPT['reload'] & 2 else []
        GP = p.vm(f"SG{u}", 24, 4)
        g[f'G{u}'] = []
        for m in range(3):
            acc = p.v(f"SGA{u}_{m}", 16)
            for s in range(6):
                g[f'G{u}'].append(p.mfma('big', acc.all, aAS(m, s), Y[u][4 * s:4 * s + 4], acc.all if s else 0))
            for i in range(8):
                p.valu("v_cvt_pk_bf16_f32", GP[8 * m + i], acc[2 * i], acc[2 * i + 1])
        S0, S1 = p.v(f"S{u}0", 16), p.v(f"S{u}1", 16)
        g[f'S{u}'] = []
        for kt, Sx in enumerate((S0, S1)):
            for s in range(6):
                g[f'S{u}'].append(p.mfma('big', Sx.all, Y[kt][4 * s:4 * s + 4], GP[4 * s:4 * s + 4], Sx.all if s else 0))
        SS.append((S0, S1))
    Y = Yb
    g['V'] = []
    for m in range(3):
        for u in range(2):
            acc = p.v(f"SVA{u}_{m}", 16)
            grp = []
            for s in range(6):
                grp.append(p.mfma('big', acc.all, Y[u][4 * s:4 * s + 4], aBS(m, s), acc.all if s else 0))
            g['V'].append(grp)
            for i in range(8 if u == 0 else 4):
                p.valu("v_cvt_pk_bf16_f32", VP[m][8 * u + i], acc[2 * i], acc[2 * i + 1])
            if u == 1:
                p.valu("v_cvt_pk_bf16_f32", k.V3[2 * m], acc[8], acc[9])
    P0 = p.vm("P0", 12, 4)
    e = softmax_S(p, k, 0, SS[0][0], SS[0][1], RK, RK48, RQ[0], P0)
    p.valu("v_cvt_pk_bf16_f32", k.V3[6], e, 0)
    g['PV0'], g['wr0'] = gen_PV(p, k, 0, Y0, VP, P0, k.aY[0], k.aY[1])
    e = softmax_S(p, k, 1, SS[1][0], SS[1][1], RK, RK48, RQ[1], P1)
    p.valu("v_cvt_pk_bf16_f32", k.V3[6], e, 0)
    p.part = 'T'

    def xload(X, xs):
        return [p.dsr(xs(j, s), k.aT[j], off=64 * s) for j in range(3) for s in range(3)]
    gt = gen_T(p, k, 3, xload, lambda j: k.aT[j], True)
    for j in range(3):
        p.valu("v_add_u32", k.aT[j], sDT, k.aT[j])
    p.valu("v_add_u32", k.aRw[0], sDT, k.aRw[0])
    g['T'] = gt
    p.part = 'C'
    p.salu("s_mov_b32", sT0, sO0)
    p.salu("s_mov_b32", sO0, sO1)
    p.salu("s_mov_b32", sO1, sO2)
    p.salu("s_mov_b32", sO2, sO3)
    p.salu("s_mov_b32", sO3, sT0)
    p.salu("s_mov_b32", sBM, sB0)
    p.salu("s_mov_b32", sB0, sB1)
    p.salu("s_mov_b32", sB1, sB2)
    p.salu("s_mov_b32", sB2, sB3)
    p.salu("s_mov_b32", "s10", NBYTES)
    p.salu("s_add_u32", sWID, sWID, NWG)
    p.salu("s_cmp_lt_u32", None, sWID, NWIN)
    p.salu("s_cselect_b32", "s6", NBYTES, 0)
    p.salu("s_min_u32", sT1, sWID, NWIN - 1)
    winbase(p, sB3, sT1)
    return p, g


def winbase(p, dst, w):
    p.salu("s_mul_hi_u32", sT2, w, 79536432)
    p.salu("s_mul_i32", sT3, sT2, 54)
    p.salu("s_sub_u32", sT3, w, sT3)
    p.salu("s_mul_i32", sT2, sT2, 7 * RS)
    p.salu("s_mul_i32", sT3, sT3, 1344)
    p.salu("s_add_u32", dst, sT2, sT3)


def hint(lst, release=None, deadline=None):
    for i in lst:
        if release is not None:
            i.release = release
        if deadline is not None:
            i.deadline = deadline


def backbone_body(g):
    t = g['T']
    V = g['V']
    PV1, G0, S0, G1, S1, PV0 = g['PV1'], g['G0'], g['S0'], g['G1'], g['S1'], g['PV0']
    TV = t['V']
    bb = []
    bb += PV1 + G0 + S0[0:4] + S0[6:10] + S0[4:6] + S0[10:12]
    bb += t['q1'] + t['G'] + t['S'] + TV[0] + TV[1] + t['PV'][0] + TV[2]
    bb += t['PV'][1] + G1[0:3] + t['q2'][0] + G1[3:6] + t['PV'][2] + G1[6:12] + t['q2'][1] + G1[12:18] + t['q2'][2]
    bb += S1 + V[0] + V[1] + V[2] + V[3] + V[4] + V[5] + PV0
    hint(g['ya0'], release=PV1[5])
    hint(g['ya1'], release=G0[3])
    hint(g['rk'], release=S0[2])
    hint(g['rq1'], release=S1[0])
    hint(g['yb1'], release=TV[2][10])
    hint(g['yb0'], release=G1[8])
    hint(t['xld'], release=S0[0])
    for i, r in enumerate(g['sr']):
        r.release = (PV1[0] if i < 2 else g['st'][i - 2])
    hint(g['st'], deadline=S0[11])
    hint(g['dma'], deadline=t['S'][0])
    if OPT['spread']:
        tt, at = 0, []
        for m in bb:
            at.append(tt)
            tt += PASSES[m.kind]
        for i, d in enumerate(g['dma']):
            want = OPT['d0'] + i * OPT['dd']
            kk = min(range(len(bb)), key=lambda x: abs(at[x] - want))
            d.release, d.deadline = bb[kk], bb[min(kk + 4, len(bb) - 1)]
    hint(t['ywr'], deadline=S1[6])
    t['ywr'][-1].deadline = V[0][0]
    return bb


def gen_prologue(k):
    p = Prog()
    p.blks += k.all
    R = lambda kind, text: p.ins.append(Raw(kind, text))
    v0 = Blk('v0', 1, persistent=True)
    v0.base = 0
    p.blks.append(v0)
    tid = v0[0]
    T = lambda n: p.v(n)[0]
    R('salu', f"s_cmp_ge_u32 s2, {NWG}")
    R('branch', "s_cbranch_scc1 L_end")
    R('smem', "s_load_dwordx4 s[56:59], s[0:1], 0")
    R('smem', "s_load_dwordx4 s[60:63], s[0:1], 16")
    R('smem', "s_load_dwordx4 s[64:67], s[0:1], 32")
    lane, wv = T('lane'), T('wv')
    p.valu("v_and_b32", lane, 63, tid)
    p.valu("v_lshrrev_b32", wv, 6, tid)
    p.add('valu', "v_readfirstlane_b32 " + sWAVE + ", {}", [wv], rd=[wv], swr=[sWAVE])
    if OPT['pf']:
        pfa = T('pfa')
        R('salu', "s_getpc_b64 s[68:69]")
        p.valu("v_lshlrev_b32", pfa, 6, tid)
        R('label', "L_pf:")
        p.add('vld', "global_load_dword a250, {}, s[68:69]", [pfa], rd=[pfa])
        p.valu("v_min_u32", pfa, "L_end-L_pf-16384", pfa)
        R('salu', "s_add_u32 s68, s68, 16384")
        R('salu', "s_addc_u32 s69, s69, 0")
        p.add('vld', "global_load_dword a251, {}, s[68:69]", [pfa], rd=[pfa])
    n16, g4 = T('n16'), T('g4')
    p.valu("v_and_b32", n16, 15, lane)
    p.valu("v_lshrrev_b32", g4, 4, lane)
    a, b = T('a'), T('b')
    aL, aRr = T('aL'), T('aRr')
    p.valu("v_lshrrev_b32", a, 2, n16)
    p.valu("v_and_b32", b, 3, n16)
    p.valu("v_lshl_add_u32", a, a, 3, b)
    p.valu("v_mul_u32_u24", aL, 576, a)
    p.valu("v_lshl_add_u32", aL, g4, 4, aL)
    p.valu("v_mul_u32_u24", aRr, 576, n16)
    p.valu("v_lshl_add_u32", aRr, g4, 4, aRr)
    R('wait', "s_waitcnt lgkmcnt(0)")
    for d, s in (("s4", "s56"), ("s5", "s57"), ("s8", "s66"), ("s9", "s67")):
        p.salu("s_mov_b32", d, s)
    p.salu("s_mov_b32", "s6", NBYTES)
    p.salu("s_mov_b32", "s7", "0x00020000")
    p.salu("s_mov_b32", "s10", 0)
    p.salu("s_mov_b32", "s11", "0x00020000")
    p.salu("s_cmp_ge_u32", None, sWAVE, 2)
    p.salu("s_cselect_b32", "s12", "s62", "s58")
    p.salu("s_cselect_b32", "s13", "s63", "s59")
    p.salu("s_cselect_b32", "s16", "s64", "s60")
    p.salu("s_cselect_b32", "s17", "s65", "s61")
    p.salu("s_mov_b32", sM0, WO_T)
    p.salu("s_cselect_b32", sM0, WO_S, sM0)
    p.salu("s_mov_b32", "s14", 55296)
    p.salu("s_mov_b32", "s15", "0x00020000")
    p.salu("s_mov_b32", "s18", 18432)
    p.salu("s_mov_b32", "s19", "0x00020000")
    p.salu("s_and_b32", sT0, sWAVE, 1)
    p.salu("s_mul_i32", sT1, sT0, 384)
    lin = T('lin')
    p.valu("v_lshlrev_b32", lin, 4, lane)
    for kt in range(6):
        row = 32 * (kt >> 1) + 4 * (kt & 1)
        p.salu("s_add_u32", sT2, sT1, row * 576)
        for si in range(3):
            q = 4 * (3 * kt + si)
            p.add('vld', f"buffer_load_dwordx4 a[{q}:{q + 3}], {{}}, {SW}, {sT2} offen offset:{64 * si}", [aL], rd=[aL], srd=[sT2])
    p.salu("s_cmp_lg_u32", None, sT0, 0)
    R('branch', "s_cbranch_scc1 L_fold_b")
    for ct in range(6):
        p.salu("s_mov_b32", sT2, 16 * ct * 576 + 192)
        for si in range(3):
            q = 72 + 4 * (3 * ct + si)
            p.add('vld', f"buffer_load_dwordx4 a[{q}:{q + 3}], {{}}, {SW}, {sT2} offen offset:{64 * si}", [aRr], rd=[aRr], srd=[sT2])
    R('branch', "s_branch L_fold_c")
    R('label', "L_fold_b:")
    for i in range(18):
        p.salu("s_add_u32", "m0", sM0, 1024 * i)
        p.salu("s_mov_b32", sT2, 1024 * i)
        p.add('dma', f"buffer_load_dwordx4 {{}}, {SW2}, {sT2} offen lds", [lin], rd=[lin], srd=['m0', sT2])
    R('label', "L_fold_c:")
    p.salu("s_cmp_lt_u32", None, "s2", NWIN - 11 * NWG)
    p.salu("s_cselect_b32", sNWIN, 12, 11)
    winbase(p, sB0, "s2")
    p.salu("s_add_u32", sWID, "s2", NWG)
    winbase(p, sB1, sWID)
    p.salu("s_add_u32", sWID, sWID, NWG)
    winbase(p, sB2, sWID)
    p.salu("s_add_u32", sWID, sWID, NWG)
    winbase(p, sB3, sWID)
    p.salu("s_mov_b32", sBM, sB0)
    p.salu("s_mov_b32", sO0, 3 * BUFSZ)
    p.salu("s_mov_b32", sO1, 0)
    p.salu("s_mov_b32", sO2, BUFSZ)
    p.salu("s_mov_b32", sO3, 2 * BUFSZ)
    p.salu("s_mul_i32", sPL, sWAVE, PLANE)
    q, pp, pos, sw, row = T('q'), T('pp'), T('pos'), T('sw'), T('row')
    tbase = T('tbase')
    p.salu("s_mul_i32", sT2, sWAVE, TS)
    p.valu("v_mov_b32", tbase, sT2)
    for i in range(9):
        p.valu("v_add_u32", q, 64 * i, lane)
        p.valu("v_mul_u32_u24", pp, 5462, q)
        p.valu("v_lshrrev_b32", pp, 16, pp)
        p.valu("v_mul_u32_u24", pos, 12, pp)
        p.valu("v_sub_u32", pos, q, pos)
        p.valu("v_lshrrev_b32", sw, 2, pp)
        p.valu("v_and_b32", a, 2, pp)
        p.valu("v_xor_b32", sw, sw, a)
        p.valu("v_xor_b32", sw, sw, wv)
        p.valu("v_and_b32", sw, 3, sw)
        p.valu("v_xor_b32", pos, pos, sw)
        p.valu("v_mul_u32_u24", row, 9363, pp)
        p.valu("v_lshrrev_b32", row, 16, row)
        p.valu("v_mul_u32_u24", a, RS - 7 * 192, row)
        p.valu("v_mul_u32_u24", b, 192, pp)
        p.valu("v_add3_u32", a, a, b, tbase)
        p.valu("v_lshl_add_u32", k.goff[i], pos, 4, a)
    p.valu("v_add_u32", a, 6 * RS + 6 * 192, tbase)
    p.valu("v_add_u32", a, a, lin)
    oob = T('oob')
    p.valu("v_mov_b32", oob, OOB)
    p.add('valu', "v_cmp_gt_u32 s[68:69], 12, {}", [lane], rd=[lane], swr=['s68', 's69'])
    p.valu("v_cndmask_b32_e64", k.goff[9], oob, a, "s[68:69]")
    ldf = " nt" if OPT['ld_nt'] else ""
    for i in range(9):
        p.salu("s_add_u32", "m0", sPL, 1024 * i)
        p.add('dma', "buffer_load_dwordx4 {}, " + SX + ", " + sB0 + " offen" + ldf + " lds", [k.goff[i]], rd=[k.goff[i]], srd=['m0', sB0])
    p.salu("s_add_u32", sT3, sPL, BUFSZ)
    for i in range(9):
        p.salu("s_add_u32", "m0", sT3, 1024 * i)
        p.add('dma', "buffer_load_dwordx4 {}, " + SX + ", " + sB1 + " offen" + ldf + " lds", [k.goff[i]], rd=[k.goff[i]], srd=['m0', sB1])
    lo = p.v('lo')
    aT3 = Blk('aT3', 1, persistent=True)
    aT3.base = k.low - 1
    p.blks.append(aT3)
    X3 = Blk('X3', 20, liveout=True)
    X3.base = 2
    p.blks.append(X3)
    ii, ww, tt = T('ii'), T('ww'), T('tt')
    p.valu("v_lshrrev_b32", ii, 2, n16)
    p.valu("v_lshl_add_u32", ii, wv, 2, ii)
    p.valu("v_and_b32", tt, 3, n16)
    p.valu("v_mul_u32_u24", ww, NWG, ii)
    p.valu("v_add_u32", ww, "s2", ww)
    p.salu("s_mov_b32", sT2, 79536432)
    p.valu("v_mul_hi_u32", a, ww, sT2)
    p.valu("v_mul_u32_u24", b, 54, a)
    p.valu("v_sub_u32", b, ww, b)
    p.salu("s_mov_b32", sT2, 7 * RS)
    p.valu("v_mul_lo_u32", a, a, sT2)
    p.valu("v_mul_u32_u24", b, 1344, b)
    p.salu("s_mov_b32", sT3, TS)
    p.valu("v_mul_lo_u32", q, tt, sT3)
    p.valu("v_add3_u32", a, a, b, q)
    p.valu("v_add_u32", a, 6 * RS + 6 * 192, a)
    p.valu("v_lshl_add_u32", a, g4, 4, a)
    p.add('valu', "v_cmp_gt_u32 s[68:69], " + sNWIN + ", {}", [ii], rd=[ii], srd=[sNWIN], swr=['s68', 's69'])
    p.valu("v_cndmask_b32_e64", lo[0], oob, a, "s[68:69]")
    for s_ in range(3):
        p.add('vld', f"buffer_load_dwordx4 a[{144 + 4 * s_}:{147 + 4 * s_}], {{}}, {SX}, 0 offen offset:{64 * s_}", [lo[0]], rd=[lo[0]])
    p.valu("v_mul_u32_u24", a, ENT, ii)
    p.valu("v_mul_u32_u24", b, 192, tt)
    p.valu("v_add_u32", a, TAB, a)
    p.valu("v_add_u32", a, a, b)
    p.valu("v_lshl_add_u32", a, g4, 4, a)
    p.add('valu', "v_cmp_gt_u32 s[68:69], 12, {}", [ii], rd=[ii], swr=['s68', 's69'])
    p.valu("v_cndmask_b32_e64", aT3[0], oob, a, "s[68:69]")
    ppx = T('ppx')
    p.valu("v_lshrrev_b32", ppx, 2, n16)
    for j in range(3):
        p.valu("v_mul_u32_u24", pp, 12, wv)
        p.valu("v_add3_u32", pp, pp, ppx, 4 * j)
        p.valu("v_lshrrev_b32", sw, 2, pp)
        p.valu("v_and_b32", a, 2, pp)
        p.valu("v_xor_b32", sw, sw, a)
        p.valu("v_xor_b32", sw, sw, tt)
        p.valu("v_xor_b32", sw, sw, g4)
        p.valu("v_and_b32", sw, 3, sw)
        p.valu("v_mul_u32_u24", a, PLANE, tt)
        p.valu("v_mul_u32_u24", b, 192, pp)
        p.valu("v_add_u32", a, a, b)
        p.valu("v_lshl_add_u32", k.aT[j], sw, 4, a)
    jj = T('jj')
    p.valu("v_sub_u32", jj, ppx, g4)
    p.valu("v_and_b32", jj, 3, jj)
    p.valu("v_mul_u32_u24", a, 12, wv)
    p.valu("v_lshl_add_u32", a, jj, 2, a)
    p.valu("v_add_u32", a, a, g4)
    p.valu("v_mul_u32_u24", b, 48, tt)
    p.valu("v_add_u32", a, a, b)
    p.valu("v_lshlrev_b32", a, 2, a)
    p.valu("v_add_u32", a, RTAB, a)
    p.valu("v_lshl_add_u32", b, wv, 2, g4)
    p.add('valu', "v_cmp_gt_u32 s[68:69], 12, {}", [b], rd=[b], swr=['s68', 's69'])
    p.valu("v_mul_u32_u24", b, ENT, b)
    p.valu("v_lshl_add_u32", b, tt, 2, b)
    p.valu("v_add_u32", b, TAB + 768, b)
    p.valu("v_cndmask_b32_e64", b, oob, b, "s[68:69]")
    for j in range(1, 4):
        p.add('valu', f"v_cmp_ne_u32 {MRG[j]}, {j}, {{}}", [jj], rd=[jj], swr=Prog._sregs([MRG[j]]))
        p.add('valu', f"v_cmp_eq_u32 {SEL[j]}, {j}, {{}}", [tt], rd=[tt], swr=Prog._sregs([SEL[j]]))
    p.valu("v_cndmask_b32_e64", k.aRw[0], b, a, MRG[3])
    p.add('valu', "v_cmp_eq_u32 s[68:69], 0, {}", [jj], rd=[jj], swr=['s68', 's69'])
    p.valu("v_cndmask_b32_e64", k.diag[0], 0, -1, "s[68:69]")
    one_lo, one_hi = T('one_lo'), T('one_hi')
    p.valu("v_mov_b32", one_lo, "0x3f80")
    p.valu("v_mov_b32", one_hi, "0x3f800000")
    p.valu("v_cndmask_b32_e64", a, one_lo, one_hi, SEL[1])
    p.valu("v_cndmask_b32_e64", a, a, 0, SEL[2])
    p.valu("v_cndmask_b32_e64", a, a, 0, SEL[3])
    p.valu("v_and_b32", k.idm[0], a, k.diag[0])
    p.valu("v_cndmask_b32_e64", a, 0, one_lo, SEL[2])
    p.valu("v_cndmask_b32_e64", a, a, one_hi, SEL[3])
    p.valu("v_and_b32", k.idm[1], a, k.diag[0])
    for i in range(4):
        p.valu("v_mov_b32", k.ones[i], "0x3f803f80")
    for i in range(10):
        p.valu("v_mov_b32", k.V3[i], 0)
    m32, hh = T('m32'), T('hh')
    p.valu("v_and_b32", m32, 31, lane)
    p.valu("v_lshrrev_b32", hh, 5, lane)
    pl = T('pl')
    p.valu("v_mov_b32", pl, sPL)
    p.valu("v_add_u32", pl, (NBUF - 1) * BUFSZ, pl)
    p.valu("v_lshrrev_b32", sw, 2, m32)
    p.valu("v_and_b32", a, 2, m32)
    p.valu("v_xor_b32", sw, sw, a)
    p.valu("v_xor_b32", sw, sw, wv)
    p.valu("v_xor_b32", sw, sw, hh)
    p.valu("v_and_b32", sw, 3, sw)
    p.valu("v_mul_u32_u24", a, 192, m32)
    p.valu("v_add_u32", a, a, pl)
    p.valu("v_lshl_add_u32", k.aY[0], sw, 4, a)
    p.valu("v_xor_b32", k.aY[1], 32, k.aY[0])
    p.add('valu', "v_cmp_gt_u32 s[68:69], 16, {}", [m32], rd=[m32], swr=['s68', 's69'])
    p.add('valu', "v_cmp_eq_u32 s[70:71], 16, {}", [m32], rd=[m32], swr=['s70', 's71'])
    e48 = T('e48')
    p.valu("v_mul_u32_u24", e48, 192, wv)
    p.valu("v_add_u32", e48, TAB - ENT, e48)
    for e in range(2):
        p.valu("v_add_u32", a, 32 * 192, k.aY[e])
        p.valu("v_cndmask_b32_e64", a, oob, a, "s[68:69]")
        p.valu("v_lshl_add_u32", b, hh, 4, e48)
        if e:
            p.valu("v_add_u32", b, 32, b)
        p.valu("v_cndmask_b32_e64", k.aY[2 + e], a, b, "s[70:71]")
    p.valu("v_cndmask_b32_e64", k.mskA[0], -1, 0, "s[70:71]")
    p.valu("v_mov_b32", a, ENT)
    p.valu("v_cndmask_b32_e64", k.cB[0], 0, a, "s[70:71]")
    rb, r48 = T('rb'), T('r48')
    p.valu("v_mul_u32_u24", rb, 192, wv)
    p.valu("v_add_u32", rb, (NBUF - 1) * BUFSZ + RTAB, rb)
    p.valu("v_lshlrev_b32", r48, 2, wv)
    p.valu("v_add_u32", r48, TAB - ENT + 768, r48)
    p.valu("v_lshl_add_u32", k.aRcol[0], m32, 2, rb)
    p.valu("v_add_u32", a, 128, k.aRcol[0])
    p.valu("v_cndmask_b32_e64", a, oob, a, "s[68:69]")
    p.valu("v_cndmask_b32_e64", k.aRcol[1], a, r48, "s[70:71]")
    p.valu("v_lshl_add_u32", k.aRrow[0], hh, 4, rb)
    p.add('valu', "v_cmp_eq_u32 s[68:69], 0, {}", [hh], rd=[hh], swr=['s68', 's69'])
    p.valu("v_cndmask_b32_e64", k.aR48[0], oob, r48, "s[68:69]")
    p.valu("v_mov_b32", a, f32(-1e30))
    p.valu("v_cndmask_b32_e64", k.neg[0], a, 0, "s[68:69]")
    p.valu("v_add_u32", k.aStg[0], pl, lin)
    p.valu("v_add_u32", a, e48, lin)
    p.add('valu', "v_cmp_gt_u32 s[68:69], 12, {}", [lane], rd=[lane], swr=['s68', 's69'])
    p.valu("v_cndmask_b32_e64", k.aStg48[0], oob, a, "s[68:69]")
    p.valu("v_lshrrev_b32", a, 4, m32)
    p.add('valu', "v_cmp_eq_u32 s[68:69], {}, {}", [a, hh], rd=[a, hh], swr=['s68', 's69'])
    p.valu("v_cndmask_b32_e64", q, 0, one_lo, "s[68:69]")
    p.valu("v_bfe_u32", a, m32, 2, 1)
    p.valu("v_bfe_u32", b, m32, 3, 1)
    p.valu("v_lshl_add_u32", a, a, 1, b)
    for i in range(4):
        p.add('valu', f"v_cmp_eq_u32 s[68:69], {i}, {{}}", [a], rd=[a], swr=['s68', 's69'])
        p.valu("v_cndmask_b32_e64", k.smfA[i], 0, q, "s[68:69]")
    p.valu("v_and_b32", b, 3, m32)
    p.valu("v_mul_u32_u24", k.smfI[0], "0x1111", b)
    p.valu("v_xor_b32", a, 1, b)
    p.valu("v_mul_u32_u24", a, "0x4444", a)
    p.valu("v_or_b32", k.smfI[0], k.smfI[0], a)
    mpos = T('mpos')
    p.valu("v_lshrrev_b32", a, 3, n16)
    p.valu("v_lshlrev_b32", a, 4, a)
    p.valu("v_and_b32", b, 7, n16)
    p.valu("v_add_u32", a, a, b)
    p.valu("v_and_b32", b, 1, g4)
    p.valu("v_lshl_add_u32", a, b, 3, a)
    p.valu("v_lshrrev_b32", b, 1, g4)
    p.valu("v_lshl_add_u32", a, b, 5, a)
    p.valu("v_lshlrev_b32", mpos, 4, a)
    wm, wb, com = T('wm'), T('wb'), T('com')
    p.valu("v_lshrrev_b32", a, 3, n16)
    p.valu("v_lshl_add_u32", com, a, 2, tt)
    p.valu("v_bfe_u32", q, n16, 2, 1)
    p.valu("v_and_b32", a, 1, g4)
    p.valu("v_lshrrev_b32", b, 1, g4)
    p.valu("v_lshl_add_u32", wm, a, 3, com)
    p.valu("v_lshl_add_u32", wm, b, 5, wm)
    p.valu("v_lshl_add_u32", wm, q, 6, wm)
    p.valu("v_lshl_add_u32", wb, a, 5, com)
    p.valu("v_lshl_add_u32", wb, q, 3, wb)
    p.valu("v_lshl_add_u32", wb, b, 6, wb)
    p.add('valu', "v_cmp_gt_u32 s[68:69], 2, {}", [wv], rd=[wv], swr=['s68', 's69'])
    aFw = T('aFw')
    p.valu("v_cndmask_b32_e64", aFw, wb, wm, "s[68:69]")
    p.valu("v_lshlrev_b32", aFw, 4, aFw)
    p.salu("s_mov_b32", sT2, F_AT)
    p.salu("s_cmp_eq_u32", None, sWAVE, 1)
    p.salu("s_cselect_b32", sT2, F_BT, sT2)
    p.salu("s_cmp_eq_u32", None, sWAVE, 2)
    p.salu("s_cselect_b32", sT2, F_AS, sT2)
    p.salu("s_cmp_eq_u32", None, sWAVE, 3)
    p.salu("s_cselect_b32", sT2, F_BS, sT2)
    p.valu("v_add_u32", aFw, sT2, aFw)
    atr = T('atr')
    p.valu("v_lshlrev_b32", a, 3, g4)
    p.valu("v_add_u32", a, a, ppx)
    p.valu("v_mul_u32_u24", a, 192, a)
    p.valu("v_lshl_add_u32", a, tt, 3, a)
    p.valu("v_add_u32", atr, sM0, a)
    kap_a, kap_b = math.sqrt(96) * math.log2(math.e), math.sqrt(96)
    p.salu("s_cmp_lg_u32", None, sT0, 0)
    p.salu("s_mov_b32", sKA, f32(kap_a))
    p.salu("s_cselect_b32", sKA, f32(kap_b), sKA)
    p.salu("s_cselect_b32", sKB, 0, f32(-kap_a / 96))
    R('wait', "s_waitcnt vmcnt(21)")
    R('branch', "s_cbranch_scc0 L_fold_d")
    for ct in range(6):
        for si in range(3):
            q0 = 72 + 4 * (3 * ct + si)
            for e in range(2):
                p.add('dsr', f"ds_read_b64_tr_b16 a[{q0 + 2 * e}:{q0 + 2 * e + 1}], {{}} offset:{(32 * si + 4 * e) * 192 + 32 * ct}", [atr], rd=[atr])
            if si == 2 and ct % 2:
                R('wait', "s_waitcnt lgkmcnt(0)")
    R('label', "L_fold_d:")
    D = [[p.v(f"D{kt}_{ct}", 4) for ct in range(6)] for kt in range(6)]
    for ct in range(6):
        for kt in range(6):
            for si in range(3):
                qa, qb = 4 * (3 * kt + si), 72 + 4 * (3 * ct + si)
                p.mfma('med', D[kt][ct].all, f"a[{qa}:{qa + 3}]", f"a[{qb}:{qb + 3}]", D[kt][ct].all if si else 0)
    pk = lambda op, d, *s, mods="": p.valu(op, d, *s, mods=mods)
    cs = [p.v(f"cs{ct}", 2) for ct in range(6)]
    c2 = p.v("c2", 2)
    for ct in range(6):
        pk("v_pk_add_f32", cs[ct].all, D[0][ct][0:2], D[0][ct][2:4])
        for kt in range(1, 6):
            pk("v_pk_add_f32", cs[ct].all, cs[ct].all, D[kt][ct][0:2])
            pk("v_pk_add_f32", cs[ct].all, cs[ct].all, D[kt][ct][2:4])
        p.valu("v_add_f32", cs[ct][0], cs[ct][0], cs[ct][1])
    for sw_ in (p.swap32, p.swap16):
        for ct in range(6):
            p.valu("v_mov_b32", cs[ct][1], cs[ct][0])
        for ct in range(6):
            sw_(cs[ct][0], cs[ct][1])
        for ct in range(6):
            p.valu("v_add_f32", cs[ct][0], cs[ct][0], cs[ct][1])
    for ct in range(6):
        p.valu("v_mul_f32", cs[ct][0], f32(-1.0 / 96), cs[ct][0])
    for ct in range(6):
        for kt in range(6):
            for h in range(2):
                pk("v_pk_add_f32", D[kt][ct][2 * h:2 * h + 2], D[kt][ct][2 * h:2 * h + 2], cs[ct].all, mods="op_sel_hi:[1,0]")
    rs = [p.v(f"rs{kt}", 4) for kt in range(6)]
    for kt in range(6):
        for h in range(2):
            pk("v_pk_add_f32", rs[kt][2 * h:2 * h + 2], D[kt][0][2 * h:2 * h + 2], D[kt][1][2 * h:2 * h + 2])
            for ct in range(2, 6):
                pk("v_pk_add_f32", rs[kt][2 * h:2 * h + 2], rs[kt][2 * h:2 * h + 2], D[kt][ct][2 * h:2 * h + 2])
    for rot in (8, 4, 2, 1):
        for kt in range(6):
            for r in range(4):
                p.valu("v_add_f32_dpp", rs[kt][r], rs[kt][r], rs[kt][r], dpp=True, mods=f"row_ror:{rot} row_mask:0xf bank_mask:0xf")
    p.valu("v_mov_b32", c2[0], sKA)
    p.valu("v_mov_b32", c2[1], sKB)
    for kt in range(6):
        for h in range(2):
            pk("v_pk_mul_f32", rs[kt][2 * h:2 * h + 2], rs[kt][2 * h:2 * h + 2], c2.all, mods="op_sel:[0,1] op_sel_hi:[1,1]")
    for s in range(3):
        for ct in range(6):
            o = p.v(f"fo{s}_{ct}", 4)
            for e in range(2):
                kt = 2 * s + e
                for h in range(2):
                    pk("v_pk_fma_f32", D[kt][ct][2 * h:2 * h + 2], D[kt][ct][2 * h:2 * h + 2], c2.all, rs[kt][2 * h:2 * h + 2],
                       mods="op_sel_hi:[1,0,1]")
                    p.valu("v_cvt_pk_bf16_f32", o[2 * e + h], D[kt][ct][2 * h], D[kt][ct][2 * h + 1])
            p.dsw(aFw, o.all, off=(ct >> 1) * 6144 + s * 2048 + (ct & 1) * 256)
    R('wait', "s_waitcnt lgkmcnt(0) vmcnt(0)")
    for i in range(12):
        p.add('valu', f"v_accvgpr_read_b32 {{}}, a{144 + i}", [X3[2 + 6 * (i >> 2) + (i & 3)]], wr=[X3[2 + 6 * (i >> 2) + (i & 3)]])
    R('barrier', "s_barrier")
    a1, a2 = T('a1'), T('a2')
    p.valu("v_add_u32", a1, F_AT, mpos)
    p.valu("v_add_u32", a2, F_AS, lin)
    spill = []
    p.valu("v_add_u32", k.aW[0], SPILL, lin)
    for m in range(6):
        for s in range(3):
            p.add('dsr', f"ds_read_b128 {aBT(m, s)}, {{}} offset:{medoff(m, s) + F_BT - F_AT}", [a1], rd=[a1])
            if 3 * m + s < 10:
                p.add('dsr', f"ds_read_b128 {aAT(m, s)}, {{}} offset:{medoff(m, s)}", [a1], rd=[a1])
            else:
                q_ = 4 * (3 * m + s - 10)
                if q_ < 20:
                    p.dsr(k.WV[q_:q_ + 4], a1, off=medoff(m, s))
                else:
                    w = p.v(f"ws{q_}", 4)
                    p.dsr(w.all, a1, off=medoff(m, s))
                    spill.append((w, 256 * (q_ - 20)))
    for m in range(3):
        for s in range(6):
            p.add('dsr', f"ds_read_b128 {aAS(m, s)}, {{}} offset:{bigoff(m, s)}", [a2], rd=[a2])
            p.add('dsr', f"ds_read_b128 {aBS(m, s)}, {{}} offset:{bigoff(m, s) + F_BS - F_AS}", [a2], rd=[a2])
    for w, off in spill:
        p.dsw(k.aW[0], w.all, off=off)
    R('wait', "s_waitcnt lgkmcnt(0)")
    R('barrier', "s_barrier")
    p.salu("s_add_u32", sM0, sPL, 2 * BUFSZ)
    for i in range(9):
        p.salu("s_add_u32", "m0", sM0, 1024 * i)
        p.add('dma', "buffer_load_dwordx4 {}, " + SX + ", " + sB2 + " offen" + ldf + " lds", [k.goff[i]], rd=[k.goff[i]], srd=['m0', sB2])
    for t_, i in enumerate(p.ins):
        i.t = t_
    assert allocate(p.ins, p.blks, verbose=True)
    seq, _ = insert_waits(p.ins, hoist=False)
    seq, _ = fix_hazards(seq)
    return seq, X3, aT3


def gen_first(k, lo, aT3):
    p = Prog()
    p.blks += k.all + [aT3]

    def xload(X, xs):
        X[3].base, X[3].carried = lo.base, True
        return [p.dsr(xs(j, s), k.aT[j], off=64 * s) for j in range(3) for s in range(3)]
    t = gen_T(p, k, 4, xload, lambda j: k.aT[j] if j < 3 else aT3[0], True)
    for j in range(3):
        p.valu("v_add_u32", k.aT[j], BUFSZ, k.aT[j])
    a = p.v("a")[0]
    p.valu("v_add_u32", k.aRw[0], BUFSZ, k.aRw[0])
    p.valu("v_mov_b32", a, OOB)
    p.valu("v_cndmask_b32_e64", k.aRw[0], a, k.aRw[0], MRG[3])
    G, V, q1 = t['G'], t['V'], t['q1']
    bb = q1[18:] + q1[:18] + G + t['S'] + V[0] + V[1] + t['PV'][0] + V[2]
    bb += t['PV'][1] + t['q2'][0] + V[3] + t['PV'][2] + t['q2'][1] + t['PV'][3] + t['q2'][2] + t['q2'][3]
    order, total = schedule(p.ins, bb, verbose=True)
    assert allocate(order, p.blks, verbose=True)
    seq, _ = insert_waits(order)
    seq, n = fix_hazards(seq)
    print(f"  first: {len(seq)} instr, nops {n}, estimate {estimate(seq) * 4} cycles")
    return seq


STAMP_N = [0]


def stamp(L, idx_text=None):
    if not OPT['stamp']:
        return
    L.append("    s_memtime s[72:73]")
    L.append("    s_memrealtime s[74:75]")
    L.append("    s_waitcnt lgkmcnt(0)")
    L.append("    v_accvgpr_read_b32 v0, a255")
    L.append("    v_mov_b32 v0, s72")
    L.append("    s_nop 1")
    L.append("    buffer_store_dword v0, off, s[76:79], s80")
    L.append("    s_nop 1")
    L.append("    v_mov_b32 v0, s74")
    L.append("    s_nop 1")
    L.append("    buffer_store_dword v0, off, s[76:79], s80 offset:4")
    L.append("    s_add_u32 s80, s80, 8")


def dump_sched(order):
    line = ""
    for i in order:
        if i.kind in MFMA:
            print(line)
            line = f"{i.t:5d} {i.part:2s} {i.kind} {i.wr[0][0].name:8s}|"
        else:
            nm = i.wr[0][0].name if i.wr else (i.rd[-1][0].name if i.rd else '')
            line += f" {i.fmt.split()[0].replace('v_', '').replace('_f32', '').replace('_b32', '')[:7]}:{nm}"
    print(line)


def finalize(order, parts, wrap=None):
    seq = [i for i in order if i.part in parts]
    seq, out = insert_waits(seq)
    return seq


def main(path):
    k = K()
    pro, lo, aT3 = gen_prologue(k)
    first = gen_first(k, lo, aT3)
    p, g = gen_body(k)
    p.blks += k.all
    bb = backbone_body(g)
    order, total = schedule(p.ins, bb, verbose=True, lookahead=OPT['lookahead'])
    if OPT['dump']:
        dump_sched(order)
    assert allocate(order, p.blks, verbose=2), "register allocation failed"
    tail = [Raw('salu', f"s_sub_u32 {sCNT}, {sCNT}, 1"), Raw('salu', f"s_cmp_lg_u32 {sCNT}, 0"),
            Raw('wait', "s_waitcnt vmcnt(19) lgkmcnt(0)"), Raw('barrier', "s_barrier"), Raw('branch', "s_cbranch_scc1 L_loop")]
    loop = finalize(order, ('C', 'Sb', 'D', 'A', 'T', 'Sa')) + tail
    loop, n = fix_hazards(loop, wrap=loop)
    print(f"  loop: {len(loop)} instr, nops {n}, estimate {estimate(loop) * 4} cycles")
    e0 = finalize(order, ('C', 'Sb', 'A', 'Sa')) + [Raw('wait', "s_waitcnt lgkmcnt(0)")]
    e0, n = fix_hazards(e0, wrap=loop)
    print(f"  e0: {len(e0)} instr, nops {n}, estimate {estimate(e0) * 4} cycles")
    e1 = finalize(order, ('Sb',))
    e1, n = fix_hazards(e1, wrap=e0)
    print(f"  e1: {len(e1)} instr, nops {n}, estimate {estimate(e1) * 4} cycles")
    L = []
    hdr = open(os.path.join(os.path.dirname(os.path.abspath(__file__)), "header.txt")).read().rstrip("\n")
    L.append(hdr)
    L.append(f"; @launch grid=({NWG},1,1) block=(256,1,1) lds={LDS_BYTES}")
    L.append(f""".amdgcn_target "amdgcn-amd-amdhsa--gfx950"
.text
.globl {NAME}_kernel
.p2align 8
.type {NAME}_kernel,@function
{NAME}_kernel:""")
    em = lambda seq: [L.append(("" if i.kind == 'label' else "    ") + i.text()) for i in seq]
    if OPT['stamp']:
        L.append("""    s_memtime s[82:83]
    s_memrealtime s[84:85]
    s_load_dwordx2 s[76:77], s[0:1], 56
    v_lshrrev_b32 v1, 6, v0
    s_mov_b32 s78, 0x1000000
    s_mov_b32 s79, 0x00020000
    v_readfirstlane_b32 s81, v1
    s_lshl_b32 s80, s2, 2
    s_add_u32 s80, s80, s81
    s_lshl_b32 s80, s80, 8
    s_waitcnt lgkmcnt(0)
    v_mov_b32 v1, s82
    v_mov_b32 v2, s84
    buffer_store_dword v1, off, s[76:79], s80
    buffer_store_dword v2, off, s[76:79], s80 offset:4
    s_add_u32 s80, s80, 8
    s_waitcnt vmcnt(0)""")
        for i in pro:
            L.append(("" if i.kind == 'label' else "    ") + i.text())
            if i.kind == 'barrier' or i.text().startswith("L_fold_d"):
                stamp(L)
    else:
        em(pro)
    em(first)
    L.append(f"    s_sub_u32 {sCNT}, {sNWIN}, 1")
    L.append("    s_waitcnt lgkmcnt(0)")
    L.append("    s_barrier")
    L.append("    s_nop 7")
    L.append(".p2align 6")
    L.append("L_loop:")
    stamp(L)
    em(loop)
    stamp(L)
    em(e0)
    stamp(L)
    em(e1)
    stamp(L)
    if OPT['stamp']:
        L.append("    s_waitcnt vmcnt(0)")
    stamp(L)
    L.append("L_end:")
    L.append("    s_endpgm")
    L.append(f""".section .rodata,"a"
.p2align 6
.amdhsa_kernel {NAME}_kernel
  .amdhsa_next_free_vgpr 512
  .amdhsa_next_free_sgpr 96
  .amdhsa_accum_offset 256
  .amdhsa_group_segment_fixed_size 0
  .amdhsa_kernarg_size 64
  .amdhsa_user_sgpr_count 2
  .amdhsa_user_sgpr_kernarg_segment_ptr 1
  .amdhsa_system_sgpr_workgroup_id_x 1
.end_amdhsa_kernel""")
    open(path, "w").write("\n".join(L) + "\n")


if __name__ == "__main__":
    for a in sys.argv[2:]:
        kk, vv = a.split("=")
        OPT[kk] = type(OPT[kk])(int(vv))
    main(sys.argv[1] if len(sys.argv) > 1 else f"cdna_kernels/{NAME}.s")
```

```python
import random

PASSES = {'big': 8, 'med': 4}
MFMA = ('big', 'med')
VALU = ('valu', 'trans', 'swap')
MEM = ('dsr', 'dsw', 'dma', 'vst', 'vld')
SCALAR = ('salu', 'wait', 'nop', 'barrier', 'branch', 'label', 'smem')


class Blk:
    def __init__(self, name, size, persistent=False, carried=False, align=None, liveout=False):
        self.name, self.size = name, size
        self.liveout = liveout
        self.persistent, self.carried = persistent, carried
        self.align = align if align else (2 if size > 1 else 1)
        self.base = None

    def __getitem__(self, i):
        if isinstance(i, slice):
            a = i.start or 0
            b = self.size if i.stop is None else i.stop
            assert 0 <= a < b <= self.size, (self.name, a, b)
            return Reg(self, a, b - a)
        assert 0 <= i < self.size, (self.name, i)
        return Reg(self, i, 1)

    @property
    def all(self):
        return Reg(self, 0, self.size)

    def __repr__(self):
        return f"<{self.name}:{self.size}@{self.base}>"


class Reg:
    def __init__(self, blk, off, n):
        self.blk, self.off, self.n = blk, off, n

    def elems(self):
        return [(self.blk, self.off + i) for i in range(self.n)]

    def __getitem__(self, i):
        if isinstance(i, slice):
            a = i.start or 0
            b = self.n if i.stop is None else i.stop
            return Reg(self.blk, self.off + a, b - a)
        return Reg(self.blk, self.off + i, 1)

    def text(self):
        a = self.blk.base + self.off
        if self.n > 1:
            assert a % 2 == 0, (self.blk, self.off, self.n)
            return f"v[{a}:{a + self.n - 1}]"
        return f"v{a}"


class Multi:
    def __init__(self, blks):
        self.blks = blks
        self.c = blks[0].size

    def __getitem__(self, i):
        if isinstance(i, slice):
            a, b = i.start, i.stop
            assert a // self.c == (b - 1) // self.c
            return self.blks[a // self.c][a % self.c: a % self.c + (b - a)]
        return self.blks[i // self.c][i % self.c]


class Ins:
    _n = 0

    def __init__(self, kind, fmt, ops, wr, rd, swr=(), srd=(), part=None, after=(), dur=None, dpp=(), srcc=None,
                 release=None, deadline=None, acc=False):
        self.kind, self.fmt, self.ops = kind, fmt, ops
        self.wr = [e for r in wr for e in r.elems()]
        self.rd = [e for r in rd for e in r.elems()]
        self.swr, self.srd = list(swr), list(srd)
        self.part = part
        self.after = list(after)
        self.dpp = [e for r in dpp for e in r.elems()]
        self.srcc = srcc
        self.acc = acc
        self.release = release
        self.deadline = deadline
        if dur is None:
            dur = {'trans': 2, 'swap': 2, 'big': 2, 'med': 2, 'vst': 6}.get(kind, 1)
        self.dur = dur
        self.id = Ins._n
        Ins._n += 1
        self.t = None

    def text(self):
        return self.fmt.format(*[o.text() if isinstance(o, Reg) else o for o in self.ops])

    def __repr__(self):
        return f"<{self.kind} {self.fmt} #{self.id}>"


class Prog:
    def __init__(self):
        self.ins = []
        self.blks = []
        self.part = None

    def v(self, name, size=1, **kw):
        b = Blk(name, size, **kw)
        self.blks.append(b)
        return b

    def vm(self, name, n, chunk, **kw):
        return Multi([self.v(f"{name}", chunk, **kw) for i in range(n // chunk)])

    def add(self, kind, fmt, ops, wr=(), rd=(), **kw):
        kw.setdefault('part', self.part)
        i = Ins(kind, fmt, ops, wr, rd, **kw)
        self.ins.append(i)
        return i

    @staticmethod
    def _regs(xs):
        return [x for x in xs if isinstance(x, Reg)]

    @staticmethod
    def _sregs(xs):
        out = []
        for x in xs:
            if isinstance(x, str):
                y = x.lstrip('-')
                if y in ('vcc', 'm0', 'exec'):
                    out.append(y)
                elif y.startswith('s[') and y.endswith(']'):
                    a, b = y[2:-1].split(':')
                    out += [f"s{k}" for k in range(int(a), int(b) + 1)]
                elif y.startswith('s') and y[1:].isdigit():
                    out.append(y)
        return out

    def valu(self, op, d, *src, mods="", kind='valu', rmw=False, dpp=False, fmt=None, **kw):
        ops = [d] + list(src)
        if fmt is None:
            fmt = op + " " + ", ".join("{}" for _ in ops) + (" " + mods if mods else "")
        rd = self._regs(src) + ([d] if rmw else [])
        return self.add(kind, fmt, ops, wr=[d], rd=rd, srd=self._sregs(src), dpp=[src[0]] if dpp else [], **kw)

    def trans(self, op, d, s, **kw):
        return self.valu(op, d, s, kind='trans', **kw)

    def swap32(self, a, b, **kw):
        return self.add('swap', "v_permlane32_swap_b32 {}, {}", [a, b], wr=[a, b], rd=[a, b], dpp=[a, b], **kw)

    def swap16(self, a, b, **kw):
        return self.add('swap', "v_permlane16_swap_b32 {}, {}", [a, b], wr=[a, b], rd=[a, b], dpp=[a, b], **kw)

    def mfma(self, shape, d, a, b, c, **kw):
        op = {'big': "v_mfma_f32_32x32x16_bf16", 'med': "v_mfma_f32_16x16x32_bf16"}[shape]
        acc = isinstance(c, Reg) and c.blk is d.blk and c.off == d.off and c.n == d.n
        return self.add(shape, op + " {}, {}, {}, {}", [d, a, b, c], wr=[d], rd=self._regs([a, b, c]),
                        srcc=c if isinstance(c, Reg) else None, acc=acc, **kw)

    def smfmac(self, shape, d, a, b, idx, **kw):
        op = {'big': "v_smfmac_f32_32x32x32_bf16", 'med': "v_smfmac_f32_16x16x64_bf16"}[shape]
        return self.add(shape, op + " {}, {}, {}, {}", [d, a, b, idx], wr=[d], rd=self._regs([a, b, idx, d]),
                        srcc=d, acc=True, **kw)

    def dsr(self, d, addr, off=0, op=None, **kw):
        if op is None:
            n = d.n if isinstance(d, Reg) else 4
            op = {1: "ds_read_b32", 2: "ds_read_b64", 4: "ds_read_b128"}[n]
        assert 0 <= off < 65536
        return self.add('dsr', op + " {}, {}" + (f" offset:{off}" if off else ""), [d, addr],
                        wr=self._regs([d]), rd=[addr], **kw)

    def dsw(self, addr, s, off=0, **kw):
        op, dur = {1: ("ds_write_b32", 2), 2: ("ds_write_b64", 3), 4: ("ds_write_b128", 5)}[s.n]
        assert 0 <= off < 65536
        return self.add('dsw', op + " {}, {}" + (f" offset:{off}" if off else ""), [addr, s], rd=[addr, s], dur=dur, **kw)

    def salu(self, op, d, *src, scc_w=None, scc_r=False, **kw):
        ops = ([d] if d is not None else []) + list(src)
        fmt = op + " " + ", ".join("{}" for _ in ops)
        if scc_w is None:
            scc_w = not op.startswith(('s_mov', 's_mul', 's_cselect', 's_movk'))
        swr = self._sregs([d] if d is not None else []) + (['scc'] if scc_w else [])
        srd = self._sregs(src) + (['scc'] if scc_r or op.startswith(('s_cselect', 's_addc', 's_subb')) else [])
        return self.add('salu', fmt, ops, swr=swr, srd=srd, **kw)


def raw_latency(p, c, elems):
    if p.kind in MFMA:
        n = PASSES[p.kind] + 4
        if c.kind in MFMA and c.srcc is not None and set(elems) <= set(c.srcc.elems()):
            if c.acc and c.kind == p.kind and p.wr == c.wr:
                return 1
            return PASSES[p.kind] + 3
        return n + 1
    if p.kind in ('dsr',):
        return 34
    if p.kind == 'vld':
        return 300
    if p.kind in VALU:
        if c.kind in MFMA:
            return max(p.dur, 1) + 2
        if any(e in c.dpp for e in elems):
            return p.dur + 2
        if p.kind == 'trans' and c.kind != 'trans':
            return p.dur + 1
        return p.dur
    return 1


def relax_scc(ins):
    acc = [i for i in ins if 'scc' in i.swr or 'scc' in i.srd]
    for n, i in enumerate(acc):
        reads, writes = 'scc' in i.srd, 'scc' in i.swr
        live = writes and n + 1 < len(acc) and 'scc' in acc[n + 1].srd
        i.swr = [x for x in i.swr if x != 'scc']
        i.srd = [x for x in i.srd if x != 'scc']
        if reads or live:
            i.swr.append('sccx')
        else:
            i.srd.append('sccx')


def build_deps(ins):
    relax_scc(ins)
    lastw, readers = {}, {}
    preds = {i.id: {} for i in ins}
    byid = {i.id: i for i in ins}

    def edge(a, b, lat):
        if a is b:
            return
        d = preds[b.id]
        d[a.id] = max(d.get(a.id, 0), lat)

    for i in ins:
        rawby = {}
        for e in i.rd:
            if e in lastw:
                rawby.setdefault(lastw[e].id, []).append(e)
        for pid, el in rawby.items():
            edge(byid[pid], i, raw_latency(byid[pid], i, el))
        for e in i.srd:
            if e in lastw:
                p = lastw[e]
                lat = 1
                if e == 'm0' and i.kind == 'dma':
                    lat = 2
                if p.kind == 'dsr':
                    lat = 34
                if p.kind in VALU and i.kind in VALU:
                    lat = 3
                if p.kind in VALU and i.kind in MEM:
                    lat = 6
                edge(p, i, lat)
        for e in i.wr + i.swr:
            if e in lastw:
                p = lastw[e]
                lat = 1
                if p.kind in MFMA and i.kind not in MFMA:
                    lat = PASSES[p.kind] + 5
                if p.kind == 'dsr':
                    lat = 34
                edge(p, i, lat)
            for r in readers.get(e, []):
                lat = 1
                if r.kind in MFMA and r.srcc is not None and e in r.srcc.elems() and i.kind in VALU:
                    lat = PASSES[r.kind]
                if r.kind == 'vst':
                    lat = 3
                edge(r, i, lat)
        for a in i.after:
            if a.id in byid:
                edge(a, i, 34 if (a.kind == 'dsr' and i.kind == 'barrier') else 1)
        for e in i.rd + i.srd:
            readers.setdefault(e, []).append(i)
        for e in i.wr + i.swr:
            lastw[e] = i
            readers[e] = []
    return preds


def occupancy(i):
    if i.kind == 'dsr':
        return 'lds', (4 if 'b128' in i.fmt else 2)
    if i.kind == 'dsw':
        return 'lds', {5: 13, 3: 6, 2: 4}[i.dur]
    if i.kind in ('dma', 'vld'):
        return 'vm', RES['vm_ld']
    if i.kind == 'vst':
        return 'vm', RES['vm_st']
    return None, 0


RES = dict(vm_ld=16, vm_st=20, q_lds=4, q_vm=0)


def schedule(ins, backbone, verbose=False, lookahead=48, pace=1.0, long_asap=False):
    byid = {i.id: i for i in ins}
    assert set(m.id for m in backbone) == set(i.id for i in ins if i.kind in MFMA), "backbone must list every MFMA"
    preds = build_deps(ins)
    succs = {i.id: [] for i in ins}
    for b, d in preds.items():
        for a, lat in d.items():
            succs[a].append((b, lat))
    ideal, t = {}, 0
    for m in backbone:
        ideal[m.id] = int(t * pace)
        t += PASSES[m.kind]
    tpipe = t
    tend = int(t * pace)
    dl = {}
    for i in reversed(ins):
        d = ideal[i.id] if i.kind in MFMA else tend + 40
        if i.deadline is not None:
            d = min(d, ideal[i.deadline.id] if isinstance(i.deadline, Ins) else i.deadline)
        if i.kind not in MFMA:
            for b, lat in succs[i.id]:
                d = min(d, dl[b] - max(lat, i.dur))
        dl[i.id] = d
    pos = {m.id: k for k, m in enumerate(backbone)}
    need = {}
    for i in ins:
        mx = -1
        for a in preds[i.id]:
            mx = max(mx, need[a], pos.get(a, -1))
        need[i.id] = mx
        if i.kind in MFMA:
            assert mx < pos[i.id], ("backbone order violates dependence", i, backbone[mx])
    states = {}
    for i in ins:
        for a in preds[i.id]:
            p = byid[a]
            if p.kind in VALU:
                pw = set(p.wr)
                n = 0
                if i.kind in MFMA and pw & set(i.rd):
                    n = 2
                if i.kind in VALU and pw & set(i.dpp):
                    n = 2
                if p.kind == 'trans' and i.kind in VALU and i.kind != 'trans' and pw & set(i.rd):
                    n = max(n, 1)
                if n:
                    states.setdefault(i.id, []).append((a, n))
    index = {}

    def count_ok(i, slack=0):
        return all(len(out) - index[a] - 1 + slack >= n for a, n in states.get(i.id, ()))
    npred = {i.id: len(preds[i.id]) for i in ins}
    est = {i.id: 0 for i in ins}
    ready = set(i.id for i in ins if npred[i.id] == 0 and i.kind not in MFMA)
    out = []
    t = 0
    pipe = 0
    k = 0
    free_scalar = False
    last_valu_end = -10
    late = 0
    stalls = []
    done = set()
    resfree = {'lds': -100, 'vm': -100}
    idle = [0]

    def commit(i, when):
        i.t = when
        r, o = occupancy(i)
        if r:
            resfree[r] = max(resfree[r], when) + o
        if i.kind == 'vst':
            for o in out[-8:]:
                if o.kind in MFMA:
                    for b, lat in succs[o.id]:
                        if lat > 1 and o.t + lat > when:
                            est[b] = max(est[b], o.t + lat + i.dur - 1)
        index[i.id] = len(out)
        out.append(i)
        done.add(i.id)
        idle[0] = 0
        ready.discard(i.id)
        for b, lat in succs[i.id]:
            est[b] = max(est[b], when + lat)
            npred[b] -= 1
            if npred[b] == 0 and byid[b].kind not in MFMA:
                ready.add(b)

    def released(i):
        if i.release is not None and i.release.id in byid and i.release.id not in done:
            return False
        return True

    while len(out) < len(ins):
        m = backbone[k] if k < len(backbone) else None
        m_ok = m is not None and npred[m.id] == 0
        m_time = max(t, pipe, est[m.id]) if m_ok else None
        if free_scalar:
            free_scalar = False
            c = [byid[x] for x in ready if byid[x].kind in SCALAR and est[x] <= t - 1 and released(byid[x])
                 and byid[x].kind != 'barrier']
            if c:
                c.sort(key=lambda i: (dl[i.id], i.id))
                commit(c[0], t - 1)
                continue
        go = m_ok and m_time <= t and count_ok(m, idle[0])
        if go and pace > 1.0 and t < ideal[m.id]:
            for x in ready:
                i = byid[x]
                if est[x] <= t and released(i) and i.kind in VALU:
                    go = False
                    m_time = t + 2
                    break
        if go:
            late = max(0, t - ideal[m.id])
            if pipe < t and k > 0:
                stalls.append((k, t - pipe))
            commit(m, t)
            pipe = t + PASSES[m.kind]
            t += 2
            k += 1
            free_scalar = True
            continue
        cand = []
        for x in ready:
            i = byid[x]
            if est[x] > t or not released(i) or not count_ok(i, idle[0]):
                continue
            pen = max(0, last_valu_end + 2 - t) if i.kind in MEM else 0
            d = dl[x] + late
            r, o = occupancy(i)
            if r and resfree[r] > t + pen + RES['q_' + r]:
                continue
            if i.kind in ('dsr', 'vld') and i.release is None and d - t > lookahead:
                continue
            cand.append((i, pen, d))
        horizon = max(m_time, t + 1) if m_ok else None
        after_m = bool(out) and any(o.kind in MFMA and o.t == t - 2 for o in out[-2:])
        best = None
        if cand:
            def key(c):
                i, pen, d = c
                fits = horizon is None or t + pen + i.dur <= horizon or (long_asap and i.dur > 2 and after_m)
                urgent = d <= t + 2
                mempref = 0 if (i.kind in MEM and pen == 0) else 1
                return (0 if (fits or urgent) else 1, 0 if pen == 0 or urgent else 1, mempref if (d - t < 200 or long_asap) else 1, d, i.id)
            cand.sort(key=key)
            i, pen, d = cand[0]
            fits = horizon is None or t + pen + i.dur <= horizon or (long_asap and i.dur > 2 and after_m)
            if fits or d <= t + 2:
                if not (pen > 0 and d > t + 6 and horizon is not None):
                    best = (i, pen)
        if best is None:
            t += 1
            idle[0] += 1
            if t > 100000:
                raise RuntimeError("scheduler stuck: " + repr([byid[x] for x in ready][:5]) + repr(m))
            continue
        i, pen = best
        commit(i, t + pen)
        t += pen + i.dur
        if i.kind in VALU:
            last_valu_end = t
    total = max(t, pipe)
    if verbose:
        print(f"schedule: {len(ins)} instr, ideal pipe {tpipe} slots, scheduled {total} slots ({total * 4} cycles)")
        busy = [0] * (total + 10)
        for i in out:
            if i.kind not in SCALAR:
                for x in range(i.t, i.t + i.dur):
                    busy[x] = 1
        idl = {}
        for x in range(total):
            if not busy[x]:
                idl[x // 100 * 100] = idl.get(x // 100 * 100, 0) + 1
        print(f"  vector issue busy {sum(busy)} slots; idle by time:", idl)
    return out, total


def live_ranges(order, blks):
    n = len(order)
    times = [i.t for i in order]

    def idx_after(k, dt):
        j = k
        while j + 1 < n and times[j + 1] < times[k] + dt:
            j += 1
        return j
    ev = {}
    for k, i in enumerate(order):
        for e in i.rd:
            end = k
            if i.kind == 'vst':
                end = min(n - 1, k + 2)
            if i.kind in MFMA and i.srcc is not None and e in i.srcc.elems():
                end = idx_after(k, PASSES[i.kind] + 1)
            ev.setdefault(e, []).append(('r', k, end))
        for e in i.wr:
            end = k
            if i.kind in MFMA:
                end = idx_after(k, PASSES[i.kind] + 6)
            ev.setdefault(e, []).append(('w', k, end))
    rng = {}
    for b in blks:
        for x in range(b.size):
            e = (b, x)
            if b.persistent:
                rng[e] = [(-1, n + 1)]
                continue
            L = ev.get(e, [])
            iv = []
            cur = None
            for typ, k, end in L:
                if typ == 'r':
                    if cur is None:
                        assert b.carried, ("read before write", b, x, order[k])
                        cur = [-1, end]
                    cur[1] = max(cur[1], end)
                else:
                    if cur is not None and cur[1] < k:
                        iv.append(tuple(cur))
                        cur = None
                    if cur is None:
                        cur = [k, end]
                    cur[1] = max(cur[1], end)
            if cur is not None:
                if (b.carried and L and L[0][0] == 'r' and any(x[0] == 'w' for x in L)) or b.liveout:
                    cur[1] = n + 1
                iv.append(tuple(cur))
            rng[e] = iv
    return rng


def split_pool(order, blks):
    cur = {}
    for i in order:
        def ren(e):
            return (cur.get(e[0], e[0]), e[1])
        if i.kind in MFMA and not i.acc and i.wr[0][0].name.startswith('acc'):
            old = i.wr[0][0]
            nb = Blk(old.name, old.size)
            blks.append(nb)
            cur[old] = nb
        rr = lambda r: Reg(cur.get(r.blk, r.blk), r.off, r.n)
        c_is = [n for n, o in enumerate(i.ops) if o is i.srcc]
        i.ops = [rr(o) if isinstance(o, Reg) else o for o in i.ops]
        if i.srcc is not None:
            i.srcc = i.ops[c_is[-1]] if c_is else rr(i.srcc)
        i.rd = [ren(e) for e in i.rd]
        i.wr = [ren(e) for e in i.wr]
        i.dpp = [ren(e) for e in i.dpp]
    for old in cur:
        blks.remove(old)


def allocate(order, blks, nregs=256, tries=600, seed=0, verbose=False):
    split_pool(order, blks)
    rng = live_ranges(order, blks)
    n = len(order)
    press = [0] * (n + 3)
    for e, iv in rng.items():
        for a, b in iv:
            for k in range(max(a, 0), min(b, n - 1) + 1):
                press[k] += 1
    if verbose:
        mx = max(press)
        at = press.index(mx)
        print(f"  max live registers {mx} at index {at} of {n} (t={order[at].t})")
        if verbose > 1:
            d = {}
            for e, iv in rng.items():
                if any(a <= at <= b for a, b in iv):
                    d[e[0].name] = d.get(e[0].name, 0) + 1
            print("   ", d)
            print("    pressure profile:", [(order[x].t, press[x]) for x in range(0, n, max(1, n // 40))])
    rnd = random.Random(seed)
    free = [b for b in blks if b.base is None]
    fixed = [b for b in blks if b.base is not None]

    def mask(iv):
        m = 0
        for a, b in iv:
            lo, hi = 2 * (a + 1) + 1, 2 * (b + 1) + 1
            if a == b:
                hi = lo + 1
            m |= ((1 << (hi - lo)) - 1) << lo
        return m
    masks = {e: mask(iv) for e, iv in rng.items()}
    for k, i in enumerate(order):
        if i.kind in MFMA or i.kind in ('dsr', 'vld'):
            bit = 1 << (2 * (k + 1))
            for e in i.wr + i.rd:
                masks[e] |= bit
    weight = {b: sum(bin(masks[(b, x)]).count('1') for x in range(b.size)) for b in free}
    start = {b: min([iv[0][0] for iv in (rng[(b, x)] for x in range(b.size)) if iv] or [0]) for b in free}
    best = None
    for tr in range(tries):
        if tr == 0:
            seq = sorted(free, key=lambda b: (-b.size, -weight[b]))
        elif tr == 1:
            seq = sorted(free, key=lambda b: -weight[b])
        elif tr % 3 == 2:
            jit = rnd.random() * 40
            seq = sorted(free, key=lambda b: (0 if b.size > 8 else 1, start[b] + jit * rnd.random()))
        elif tr % 3 == 0:
            seq = sorted(free, key=lambda b: (-b.size, -weight[b] * (0.5 + rnd.random())))
        else:
            seq = sorted(free, key=lambda b: -(weight[b] * (0.3 + rnd.random()) + b.size * n * 0.5 * rnd.random()))
        occ = [0] * nregs
        for b in fixed:
            for x in range(b.size):
                occ[b.base + x] |= masks[(b, x)]
        ok = True
        place = {}
        for b in seq:
            found = None
            for base in range(0, nregs - b.size + 1, b.align):
                if all((occ[base + x] & masks[(b, x)]) == 0 for x in range(b.size)):
                    found = base
                    break
            if found is None:
                ok = False
                break
            place[b] = found
            for x in range(b.size):
                occ[found + x] |= masks[(b, x)]
        if ok:
            best = place
            break
    if best is None:
        return False
    for b, base in best.items():
        b.base = base
    if verbose:
        print(f"  allocated after {tr + 1} tries, highest register v{max(b.base + b.size for b in blks) - 1}")
    return True


def phys(e):
    return e[0].base + e[1]


class Raw(Ins):
    def __init__(self, kind, text, n=1):
        super().__init__(kind, text.replace("{", "{{").replace("}", "}}"), [], [], [])
        self.n = n


def required_states(p, c):
    pw = set(phys(e) for e in p.wr)
    cr = set(phys(e) for e in c.rd)
    cw = set(phys(e) for e in c.wr)
    need = 0
    if p.kind in MFMA:
        n = PASSES[p.kind]
        if c.kind in MFMA:
            cc = set(phys(e) for e in c.srcc.elems()) if c.srcc is not None else set()
            if pw & cc:
                same = c.kind == p.kind and cc == pw
                if not same:
                    need = max(need, n + 2)
            ab = set()
            for o in c.ops[1:4]:
                if isinstance(o, Reg) and o is not c.srcc:
                    ab |= set(phys(e) for e in o.elems())
            if pw & ab:
                need = max(need, n + 4)
        elif c.kind in VALU or c.kind in MEM:
            if pw & (cr | cw):
                need = max(need, n + 4)
            if p.srcc is not None and c.kind in VALU and set(phys(e) for e in p.srcc.elems()) & cw:
                need = max(need, n - 1)
    elif p.kind in VALU:
        if c.kind in MFMA and pw & cr:
            need = max(need, 2)
        if c.kind in VALU and pw & set(phys(e) for e in c.dpp):
            need = max(need, 2)
        if p.kind == 'trans' and c.kind in VALU and c.kind != 'trans' and pw & cr:
            need = max(need, 1)
        sw = set(p.swr)
        if sw & set(c.srd):
            if c.kind in VALU:
                need = max(need, 2)
            if c.kind in MEM:
                need = max(need, 5)
        if 'readlane' in c.fmt or 'readfirstlane' in c.fmt:
            if pw & cr:
                need = max(need, 1)
    elif p.kind == 'vst':
        pr = set(phys(e) for e in p.rd)
        if pr & cw:
            need = max(need, 2 if c.kind in VALU else 1)
    elif p.kind == 'salu':
        if 'm0' in p.swr and c.kind == 'dma':
            need = max(need, 1)
    return need


def path_time(chain, timed):
    t = 0
    vfree = 0
    lastm = None
    prev = None
    for q in chain:
        if q.kind == 'label':
            continue
        if prev is not None:
            t += getattr(prev, 'n', 1) if prev.kind == 'nop' else 1
        if q.kind not in SCALAR:
            if timed:
                t = max(t, vfree)
            if q.kind in MFMA and lastm is not None:
                t = max(t, lastm)
            vfree = t + (2 if q.kind in MFMA or q.kind in ('trans', 'swap') else q.dur if q.kind == 'dsw' else 1)
            if q.kind in MFMA:
                lastm = t + PASSES[q.kind]
        prev = q
    return t


def fix_hazards(seq, wrap=None):
    pre = list(wrap[-40:]) if wrap else []
    out = list(pre)
    added = 0
    for c in seq:
        lo = max(0, len(out) - 24)
        reqs = []
        for a in range(len(out) - 1, lo - 1, -1):
            need = required_states(out[a], c)
            if need:
                reqs.append((a, need))
        n = 0
        while True:
            pad = [Raw('nop', f"s_nop {n - 1}", n=n)] if n else []
            if all(path_time(out[a:] + pad + [c], out[a].kind in MFMA) - 1 >= need for a, need in reqs):
                break
            n += 1
        assert n <= 16
        if n:
            out.append(Raw('nop', f"s_nop {n - 1}", n=n))
            added += n
        out.append(c)
    return out[len(pre):], added


def insert_waits(seq, carried_lgkm=(), hoist=True):
    out = []
    lg = list(carried_lgkm)
    vm = []
    for c in seq:
        touched = set(phys(e) for e in c.rd) | set(phys(e) for e in c.wr)
        for q, name in ((lg, 'lgkmcnt'), (vm, 'vmcnt')):
            need = -1
            for k, p in enumerate(q):
                if p.kind in ('dsr', 'vld') and touched & set(phys(e) for e in p.wr):
                    need = k
                if p in getattr(c, 'wait_for', ()):
                    need = k
            if need >= 0:
                n = len(q) - need - 1
                assert n <= (15 if name == 'lgkmcnt' else 63), "counter overflow"
                w = Raw('wait', f"s_waitcnt {name}({n})")
                w.t = c.t
                at = len(out)
                if hoist and name == 'lgkmcnt' and q[need].t is not None:
                    j = len(out) - 1
                    while j >= 0 and out[j].kind not in ('dsr', 'dsw', 'smem', 'wait', 'barrier', 'label', 'branch'):
                        if out[j].kind in MFMA and out[j].t is not None and out[j].t >= q[need].t + 30:
                            if j + 1 >= len(out) or out[j + 1].kind not in SCALAR:
                                at = j + 1
                                break
                        if out[j].t is not None and out[j].t < q[need].t + 30:
                            break
                        j -= 1
                out.insert(at, w)
                del q[:need + 1]
        if c.kind == 'wait':
            txt = c.text()
            for q, name in ((lg, 'lgkmcnt'), (vm, 'vmcnt')):
                if name + "(" in txt:
                    n = int(txt.split(name + "(")[1].split(")")[0])
                    if len(q) > n:
                        del q[:len(q) - n]
        if c.kind in ('dsr', 'dsw'):
            lg.append(c)
            if len(lg) > 15:
                w = Raw('wait', "s_waitcnt lgkmcnt(14)")
                w.t = c.t
                out.append(w)
                del lg[:len(lg) - 15]
        if c.kind in ('vld', 'vst', 'dma'):
            vm.append(c)
        out.append(c)
    return out, lg


def estimate(seq):
    t = pipe = 0
    free = False
    lastv = -10
    for c in seq:
        if c.kind == 'label':
            continue
        if c.kind in MFMA:
            t = max(t, pipe)
            pipe = t + PASSES[c.kind]
            t += 2
            free = True
            continue
        if c.kind in SCALAR:
            n = getattr(c, 'n', 1) if c.kind == 'nop' else 1
            t += n - (1 if free else 0)
            free = False
            continue
        free = False
        if c.kind in MEM:
            t = max(t, lastv + 2)
        t += c.dur
        if c.kind in VALU:
            lastv = t
    return max(t, pipe)
```

```python
import sys, struct, math, os
sys.path.insert(0, os.path.dirname(os.path.abspath(__file__)))
from ir import *

NAME = "standalone__video_video_swin__vision"
NBYTES = 109734912
TS, RS = 27433728, 72576
NWIN = 2916
NWG = int(os.environ.get('NWG', 243))
PLANE = 9216
BUFSZ = 37632
RTAB = 36864
NBUF = 3
TAB = NBUF * BUFSZ
ENT = 2320
T_G, T_V, T_R = 768, 1536, 2304
F_BS = TAB + 12 * ENT
F_AS, F_AT, F_BT = 2 * BUFSZ, 2 * BUFSZ + 18432, TAB
LDS_BYTES = F_BS + 18432
OOB = 0x40000000
C96 = 96 * 1e-5


def f32(x):
    return "0x%08x" % struct.unpack("<I", struct.pack("<f", x))[0]


OPT = dict(ld_nt=1, st=1, lookahead=48, dump=0, stamp=0, pf=1, d0=40, dd=55, exp=0, pool=4, order=4, pace=100, vmst=20, wv=0)

SX, SO, SW, SW2 = "s[4:7]", "s[8:11]", "s[12:15]", "s[16:19]"
sWAVE, sNWIN, sCNT, sWID = "s20", "s21", "s22", "s23"
sB2, sB1, sB0, sBM = "s24", "s25", "s26", "s27"
sO0, sO1, sO2 = "s28", "s29", "s30"
sDT, sDS, sPL = "s31", "s42", "s43"
SEL = [None, "s[32:33]", "s[34:35]", "s[36:37]"]
MRG = [None, "s[38:39]", "s[40:41]", "s[44:45]"]
sT0, sT1, sT2, sT3 = "s46", "s47", "s48", "s49"
sM0 = "s50"
sEPS = "s51"
sDT2, sDS2, sENT2 = "s[56:57]", "s[58:59]", "s[60:61]"
sKA, sKB = "s52", "s54"


def aBT(m, s): k = 4 * (3 * m + s); return f"a[{k}:{k + 3}]"
def aAT(m, s): k = 72 + 4 * (3 * m + s); return f"a[{k}:{k + 3}]"
def aAS(m, s): k = 144 + 4 * (3 * m + s); return f"a[{k}:{k + 3}]"
def aBS(m, s): k = 216 + 4 * (3 * m + s); assert k < 256; return f"a[{k}:{k + 3}]"


def wBS(p, k, m):
    W = []
    for s in range(3):
        if 3 * m + s < 10:
            W.append(aBS(m, s))
        elif 3 * m + s < 10 + OPT['wv']:
            q = 4 * (3 * m + s - 10)
            W.append(k.WV[q:q + 4])
        else:
            w = p.v(f"WS{m}_{s}", 4)
            p.dsr(w.all, k.aW[0], off=medoff(m, s))
            W.append(w.all)
    return W
def medoff(m, s): return (m >> 1) * 6144 + s * 2048 + (m & 1) * 1024


class K:
    def __init__(self):
        mk = lambda n, s=1: Blk(n, s, persistent=True)
        self.IZ = mk('IZ', 6)
        self.ones = mk('ones', 4)
        self.goff = mk('goff', 9)
        self.mk48 = mk('mk48', 2)
        self.AT, self.AS, self.AE = mk('AT', 4), mk('AS', 5), mk('AE', 3)
        self.aT, self.aRw = self.AT[0:3], self.AT[3:4]
        self.aY, self.aRrow, self.aRcol, self.aStg, self.aRq = [self.AS[i:i + 1] for i in range(5)]
        self.aY48, self.aV48, self.aR48 = [self.AE[i:i + 1] for i in range(3)]
        names = ('aW', 'diag', 'gst3')
        for n in names:
            setattr(self, n, mk(n))
        self.WV = mk('WV', 4 * OPT['wv']) if OPT['wv'] else None
        self.all = [self.IZ, self.ones, self.mk48, self.AT] + ([self.WV] if self.WV else []) + [self.aW, self.AS, self.diag, self.AE, self.gst3, self.goff]
        top = 256
        for b in self.all:
            top -= b.size
            b.base = top
        assert all(b.base % 2 == 0 for b in (self.IZ, self.ones, self.AT, self.AS, self.AE))
        self.low = top
        if OPT['stamp']:
            z = mk('v0')
            z.base = 0
            self.all.append(z)


class Pool:
    def __init__(self, p, n):
        self.b = [p.v(f"acc{i}", 4) for i in range(n)]
        self.i = 0

    def get(self):
        self.i += 1
        return self.b[self.i % len(self.b)]


def merge(p, k, vals, name):
    nt = len(vals)
    out = []
    res = [p.v(f"{name}{i}")[0] for i in range(len(vals[0]))]
    cur = list(vals[0])
    for j in range(1, nt):
        p.salu("s_mov_b64", "vcc", MRG[j])
        for i in range(len(cur)):
            p.valu("v_cndmask_b32_dpp", res[i], vals[j][i], cur[i], "vcc", dpp=True,
                   mods=f"row_ror:{4 * j} row_mask:0xf bank_mask:0xf")
            cur[i] = res[i]
    return cur


def ln_finish(p, k, Q, SUM, name):
    nt = len(Q)
    sel = []
    for j in range(nt):
        d = p.v(f"{name}d{j}")[0]
        p.valu("v_cndmask_b32_e64", d, Q[j][0], Q[j][1], SEL[1])
        p.valu("v_cndmask_b32_e64", d, d, Q[j][2], SEL[2])
        p.valu("v_cndmask_b32_e64", d, d, Q[j][3], SEL[3])
        sel.append([d, SUM[j][0]])
    q, s = merge(p, k, sel, name + "m")
    t = p.v(name + "t")[0]
    p.valu("v_mul_f32", t, s, s)
    p.valu("v_fmamk_f32", t, t, f32(-1.0 / 96), q)
    p.valu("v_add_f32_e64", t, t, sEPS, fmt="v_add_f32_e64 {}, |{}|, {}")
    r = p.v(name + "r")[0]
    p.trans("v_rsq_f32", r, t)
    return r


class TPhase:
    def __init__(self, p, k, nt, pool, aTx):
        self.p, self.k, self.nt, self.pool, self.aTx = p, k, nt, pool, aTx
        self.X = [p.v(f"X{j}", 20) for j in range(nt)]
        self.Q = [p.v(f"Q{j}", 4) for j in range(nt)]
        self.SUM = [p.v(f"SUM{j}", 4) for j in range(nt)]
        self.GP = [p.vm(f"GP{j}", 12, 4) for j in range(nt)]
        self.ST = [p.v(f"ST{j}", 4) for j in range(nt)]
        self.VI = [p.vm(f"VI{j}", 18, 6) for j in range(nt)]
        self.YP = [p.vm(f"YP{j}", 12, 4) for j in range(nt)]
        self.Q2 = [p.v(f"Q2{j}", 4) for j in range(nt)]
        self.SUM2 = [p.v(f"SUM2{j}", 4) for j in range(nt)]
        self.ywr = []

    def xs(self, j, s):
        return self.X[j][2 + 6 * s: 6 + 6 * s]

    def load(self, js, **kw):
        return [self.p.dsr(self.xs(j, s), self.k.aT[j], off=64 * s, **kw) for j in js for s in range(3)]

    def q1(self, j):
        p, Q, SUM = self.p, self.Q, self.SUM
        for s in range(3):
            p.mfma('med', Q[j].all, self.xs(j, s), self.xs(j, s), Q[j].all if s else 0)
        for s in range(3):
            p.mfma('med', SUM[j].all, self.k.ones.all, self.xs(j, s), SUM[j].all if s else 0)

    def ln1(self):
        self.r1 = ln_finish(self.p, self.k, self.Q, self.SUM, "l1")

    def G(self, j, ms=range(6)):
        p = self.p
        for m in ms:
            acc = self.pool.get()
            for s in range(3):
                p.mfma('med', acc.all, aAT(m, s), self.xs(j, s), acc.all if s else 0)
            p.valu("v_cvt_pk_bf16_f32", self.GP[j][2 * m], acc[0], acc[1])
            p.valu("v_cvt_pk_bf16_f32", self.GP[j][2 * m + 1], acc[2], acc[3])

    def S(self, j):
        for s in range(3):
            self.p.mfma('med', self.ST[j].all, self.xs(j, s), self.GP[j][4 * s:4 * s + 4], self.ST[j].all if s else 0)

    def softmax(self):
        p, k, nt, ST, r1 = self.p, self.k, self.nt, self.ST, self.r1
        S = merge(p, k, [[ST[j][r] for r in range(4)] for j in range(nt)], "Sm")
        T4 = p.vm("T4", 4, 1)
        qp = lambda r: f"quad_perm:[{r},{r},{r},{r}] row_mask:0xf bank_mask:0xf"
        for r in range(4):
            p.valu("v_mul_f32_dpp", T4[r], r1, S[r], dpp=True, mods=qp(r))
        mx = p.v("tmx")[0]
        p.valu("v_max3_f32", mx, T4[0], T4[1], T4[2])
        p.valu("v_max_f32", mx, mx, T4[3])
        p.valu("v_mul_f32_e64", mx, mx, r1, fmt="v_mul_f32_e64 {}, -{}, {}")
        for r in range(4):
            p.valu("v_fma_f32", T4[r], T4[r], r1, mx)
        for r in range(4):
            p.trans("v_exp_f32", T4[r], T4[r])
        l0, l1 = p.v("tl0")[0], p.v("tl1")[0]
        p.valu("v_add_f32", l0, T4[0], T4[1])
        p.valu("v_add_f32", l1, T4[2], T4[3])
        p.valu("v_add_f32", l0, l0, l1)
        p.trans("v_rcp_f32", l0, l0)
        for r in range(4):
            p.valu("v_mul_f32_dpp", T4[r], r1, T4[r], dpp=True, mods=qp(r))
        for r in range(4):
            p.valu("v_mul_f32", T4[r], T4[r], l0)
        self.PM = p.vm("PM", 2, 1)
        p.valu("v_cvt_pk_bf16_f32", self.PM[0], T4[0], T4[1])
        p.valu("v_cvt_pk_bf16_f32", self.PM[1], T4[2], T4[3])

    def V(self, j, ms=range(6)):
        p, k, VI = self.p, self.k, self.VI
        for m in ms:
            acc = self.pool.get()
            first = None
            for s in range(3):
                i = p.mfma('med', acc.all, self.xs(j, s), aBT(m, s), acc.all if s else 0)
                first = first or i
            o = 6 * (m >> 1) + 4 * (m & 1)
            p.valu("v_cvt_pk_bf16_f32", VI[j][o], acc[0], acc[1])
            p.valu("v_cvt_pk_bf16_f32", VI[j][o + 1], acc[2], acc[3])
            if m & 1 == 0:
                p.valu("v_mov_b64", VI[j][3 * m + 2:3 * m + 4], k.IZ[2:4], release=first)

    def PV(self, j):
        p, k, X, VI, YP = self.p, self.k, self.X, self.VI, self.YP
        rel = [i for i in p.ins if i.kind == 'med'][-12]
        for e in range(2):
            if j == 0:
                p.valu("v_and_b32", X[j][e], self.PM[e], k.diag[0], release=rel)
            else:
                p.valu("v_and_b32_dpp", X[j][e], self.PM[e], k.diag[0], dpp=True, release=rel,
                       mods=f"row_ror:{16 - 4 * j} row_mask:0xf bank_mask:0xf")
        for c in range(1, 4):
            p.valu("v_mov_b64", X[j][6 * c:6 * c + 2], X[j][0:2])
        for m in range(6):
            s, e = m >> 1, m & 1
            acc = self.pool.get()
            p.mfma('med', acc.all, VI[j][6 * s + 2 * e: 6 * s + 2 * e + 4], X[j][6 * s + 4 * e: 6 * s + 4 * e + 4], 0)
            p.valu("v_cvt_pk_bf16_f32", YP[j][2 * m], acc[0], acc[1])
            p.valu("v_cvt_pk_bf16_f32", YP[j][2 * m + 1], acc[2], acc[3])
        for s in range(3):
            self.ywr.append(p.dsw(self.aTx(j), YP[j][4 * s:4 * s + 4], off=64 * s))

    def q2(self, j):
        p, YP, Q2, SUM2 = self.p, self.YP, self.Q2, self.SUM2
        for s in range(3):
            p.mfma('med', Q2[j].all, YP[j][4 * s:4 * s + 4], YP[j][4 * s:4 * s + 4], Q2[j].all if s else 0)
        for s in range(3):
            p.mfma('med', SUM2[j].all, self.k.ones.all, YP[j][4 * s:4 * s + 4], SUM2[j].all if s else 0)

    def ln2(self):
        r2 = ln_finish(self.p, self.k, self.Q2, self.SUM2, "l2")
        self.ywr.append(self.p.dsw(self.k.aRw[0], r2))


class SPhase:
    def __init__(self, p, k, pool, car):
        self.p, self.k, self.pool = p, k, pool
        if not car:
            mb = lambda n, c, sz: Multi([Blk(n, sz, carried=True) for _ in range(c)])
            car['Y3'] = mb("Y3", 3, 4)
            car['RK48'] = mb("RK48", 1, 1)
            car['RKq'] = mb("RKq", 1, 4)
            car['S3'] = mb("S3", 4, 4)
            for m in range(6):
                car[f'VP{m}'] = mb(f"VP{m}", 2, 4)
        for v in car.values():
            p.blks += v.blks
        self.car = car
        self.Y = [p.vm(f"Y{u}", 12, 4) for u in range(4)]
        self.GP = [p.vm(f"SG{u}", 12, 4) for u in range(4)]
        self.RK = p.vm("RK", 12, 4)
        self.RK48 = p.v("RK48n")[0]
        self.RQ = p.vm("RQ", 3, 1)
        self.VP = [car[f'VP{m}'] for m in range(6)]
        self.P = [p.vm(f"P{u}", 8, 4) for u in range(3)] + [None]
        self.st = []
        self.ow = [[], [], [], []]

    def loadY(self, u, **kw):
        p, k = self.p, self.k
        if u < 3:
            return [p.dsr(self.Y[u][4 * s:4 * s + 4], k.aY[0], off=3072 * u + 64 * s, **kw) for s in range(3)]
        return [p.dsr(self.Y[3][4 * s:4 * s + 4], k.aY48[0], off=64 * s, **kw) for s in range(3)]

    def loadG48(self, **kw):
        L = [self.p.dsr(self.GP[3][4 * s:4 * s + 4], self.k.aY48[0], off=T_G + 64 * s, **kw) for s in range(3)]
        return L

    def loadCarry(self, **kw):
        p, k, car = self.p, self.k, self.car
        L = [p.dsr(car['RKq'][0:4], k.aRq[0], **kw), p.dsr(car['RK48'][0], k.aR48[0], **kw)]
        L += [p.dsr(car['Y3'][4 * s:4 * s + 4], k.aY48[0], off=64 * s, **kw) for s in range(3)]
        return L

    def loadR(self, **kw):
        p, k = self.p, self.k
        L = [p.dsr(self.RK[4 * a:4 * a + 4], k.aRrow[0], off=64 * a, **kw) for a in range(3)]
        L.append(p.dsr(self.RK48, k.aR48[0], **kw))
        return L

    def loadRQ(self, u, **kw):
        return self.p.dsr(self.RQ[u], self.k.aRcol[0], off=64 * u, **kw)

    def loadV48(self, **kw):
        return [self.p.dsr(self.VP[m][6:8], self.k.aV48[0], off=32 * m, **kw) for m in range(6)]

    def G(self, u, ms=range(6)):
        p = self.p
        for m in ms:
            acc = self.pool.get()
            for s in range(3):
                p.mfma('med', acc.all, aAS(m, s), self.Y[u][4 * s:4 * s + 4], acc.all if s else 0)
            p.valu("v_cvt_pk_bf16_f32", self.GP[u][2 * m], acc[0], acc[1])
            p.valu("v_cvt_pk_bf16_f32", self.GP[u][2 * m + 1], acc[2], acc[3])

    def V(self, m, kts=range(3)):
        p = self.p
        W = wBS(p, self.k, m)
        for kt in kts:
            acc = self.pool.get()
            for s in range(3):
                p.mfma('med', acc.all, self.Y[kt][4 * s:4 * s + 4], W[s], acc.all if s else 0)
            p.valu("v_cvt_pk_bf16_f32", self.VP[m][2 * kt], acc[0], acc[1])
            p.valu("v_cvt_pk_bf16_f32", self.VP[m][2 * kt + 1], acc[2], acc[3])

    def allred(self, op, x, t):
        p = self.p
        for sw in (p.swap32, p.swap16):
            p.valu("v_mov_b32", t, x)
            sw(x, t)
            p.valu(op, x, x, t)

    def S(self, u):
        p, k = self.p, self.k
        S = [p.v(f"S{u}{kt}", 4) for kt in range(4)] if u < 3 else self.car['S3'].blks
        for kt in range(4):
            for s in range(3):
                p.mfma('med', S[kt].all, self.Y[kt][4 * s:4 * s + 4], self.GP[u][4 * s:4 * s + 4], S[kt].all if s else 0)
        if u == 3:
            return
        el = [S[kt][r] for kt in range(3) for r in range(4)] + [S[3][0]]
        rk = [self.RK[i] for i in range(12)] + [self.RK48]
        rq = self.RQ[u] if u < 3 else self.RK48
        P = self.P[u]
        for i in range(13):
            p.valu("v_mul_f32", el[i], el[i], rk[i])
        m0, m1 = p.v(f"mxa{u}")[0], p.v(f"mxb{u}")[0]
        p.valu("v_max3_f32", m0, el[0], el[1], el[2])
        p.valu("v_max3_f32", m1, el[3], el[4], el[5])
        p.valu("v_max3_f32", m0, m0, el[6], el[7])
        p.valu("v_max3_f32", m1, m1, el[8], el[9])
        p.valu("v_max3_f32", m0, m0, el[10], el[11])
        p.valu("v_max3_f32", m0, m0, m1, el[12])
        self.allred("v_max_f32", m0, m1)
        p.valu("v_mul_f32_e64", m0, m0, rq, fmt="v_mul_f32_e64 {}, -{}, {}")
        for i in range(13):
            p.valu("v_fma_f32", el[i], el[i], rq, m0)
            p.trans("v_exp_f32", el[i], el[i])
        l0, l1 = p.v(f"la{u}")[0], p.v(f"lb{u}")[0]
        p.valu("v_add_f32", l0, el[0], el[1])
        p.valu("v_add_f32", l1, el[2], el[3])
        for i in range(4, 12):
            d = l0 if i % 2 == 0 else l1
            p.valu("v_add_f32", d, d, el[i])
        p.valu("v_add_f32", l0, l0, l1)
        self.allred("v_add_f32", l0, l1)
        p.valu("v_add_f32", l0, l0, el[12])
        p.trans("v_rcp_f32", l0, l0)
        for i in range(13):
            p.valu("v_mul_f32", el[i], el[i], rk[i])
        for i in range(13):
            p.valu("v_mul_f32", el[i], el[i], l0)
            if i % 2 == 1:
                p.valu("v_cvt_pk_bf16_f32", P[i >> 1], el[i - 1], el[i])
        p.valu("v_cvt_pk_bf16_f32", el[12], el[12], el[12])
        p.valu("v_and_b32", P[6], el[12], k.mk48[0])
        p.valu("v_and_b32", P[7], el[12], k.mk48[1])

    def softmax48(self):
        p, k = self.p, self.k
        S = self.car['S3'].blks
        RKq, r48 = self.car['RKq'], self.car['RK48'][0]
        full = "row_mask:0xf bank_mask:0xf"
        for b in (1, 2):
            for r in range(4):
                p.valu("v_mov_b32_dpp", S[0][r], S[b][r], dpp=True, rmw=True, mods=f"quad_perm:[0,1,2,3] row_mask:0xf bank_mask:{1 << b:#x}")
        el = [S[0][r] for r in range(4)] + [S[3][0]]
        rk = [RKq[r] for r in range(4)] + [r48]
        for i in range(5):
            p.valu("v_mul_f32", el[i], el[i], rk[i])
        m0, m1 = p.v("mxa3")[0], p.v("mxb3")[0]
        p.valu("v_max3_f32", m0, el[0], el[1], el[2])
        p.valu("v_max3_f32", m0, m0, el[3], el[4])
        for rot in (4, 8):
            p.valu("v_max_f32_dpp", m0, m0, m0, dpp=True, mods=f"row_ror:{rot} {full}")
        self.allred("v_max_f32", m0, m1)
        p.valu("v_mul_f32_e64", m0, m0, r48, fmt="v_mul_f32_e64 {}, -{}, {}")
        for i in range(5):
            p.valu("v_fma_f32", el[i], el[i], r48, m0)
            p.trans("v_exp_f32", el[i], el[i])
        l0, l1 = p.v("la3")[0], p.v("lb3")[0]
        p.valu("v_add_f32", l0, el[0], el[1])
        p.valu("v_add_f32", l1, el[2], el[3])
        p.valu("v_add_f32", l0, l0, l1)
        p.valu("v_add_f32_dpp", l1, l0, l0, dpp=True, mods=f"row_shl:4 {full} bound_ctrl:0")
        p.valu("v_add_f32_dpp", l0, l0, l1, dpp=True, mods=f"row_shl:8 {full} bound_ctrl:0")
        self.allred("v_add_f32", l0, l1)
        p.valu("v_add_f32", l0, l0, el[4])
        p.trans("v_rcp_f32", l0, l0)
        for i in range(5):
            p.valu("v_mul_f32", el[i], el[i], rk[i])
        for i in range(5):
            p.valu("v_mul_f32_dpp", el[i], l0, el[i], dpp=True, mods=f"row_newbcast:0 {full}")
        P = self.P[3] = p.vm("P3", 8, 4)
        for e in range(2):
            p.valu("v_cvt_pk_bf16_f32", P[e], el[2 * e], el[2 * e + 1])
            p.valu("v_mov_b32_dpp", P[2 + e], P[e], dpp=True, mods=f"row_shl:4 {full} bound_ctrl:0")
            p.valu("v_mov_b32_dpp", P[4 + e], P[e], dpp=True, mods=f"row_shl:8 {full} bound_ctrl:0")
        p.valu("v_cvt_pk_bf16_f32", el[4], el[4], el[4])
        p.valu("v_and_b32", P[6], el[4], k.mk48[0])
        p.valu("v_and_b32", P[7], el[4], k.mk48[1])

    def PV(self, u, ss=range(3), base=None):
        p, k = self.p, self.k
        stf = ["", " nt", " sc1", " sc0 sc1", " sc0 nt sc1"][OPT['st']]
        for s in ss:
            o = p.v(f"OP{u}_{s}", 4)
            for e in range(2):
                m = 2 * s + e
                acc = self.pool.get()
                p.mfma('med', acc.all, self.VP[m][0:4], self.P[u][0:4], 0)
                p.mfma('med', acc.all, self.VP[m][4:8], self.P[u][4:8], acc.all)
                res = self.Y[u] if u < 3 else self.car['Y3']
                p.mfma('med', acc.all, k.IZ[2 - 2 * e: 6 - 2 * e], res[4 * s:4 * s + 4], acc.all)
                p.valu("v_cvt_pk_bf16_f32", o[2 * e], acc[0], acc[1])
                p.valu("v_cvt_pk_bf16_f32", o[2 * e + 1], acc[2], acc[3])
            if u == 3:
                self.st.append(p.add('vst', "buffer_store_dwordx4 {}, {}, " + SO + ", " + base + f" offen offset:{64 * s}" + stf,
                                     [o.all, k.gst3[0]], rd=[o.all, k.gst3[0]], srd=[base, 's10'], after=self.st[-1:]))
                continue
            self.ow[u].append(p.dsw(k.aY[0], o.all, off=3072 * u + 64 * s))
            if s == 2:
                for i in range(3 * u, 3 * u + 3):
                    d = p.v(f"STG{i}", 4)
                    p.dsr(d.all, k.aStg[0], off=1024 * i, after=self.ow[u], release=(self.st[-2] if i > 1 else self.ow[u][-1]))
                    self.st.append(p.add('vst', "buffer_store_dwordx4 {}, {}, " + SO + ", " + sB0 + " offen" + stf,
                                         [d.all, k.goff[i]], rd=[d.all, k.goff[i]], srd=[sB0, 's10'], after=self.st[-1:]))


def last_mfma(p, back=1):
    return [i for i in p.ins if i.kind in MFMA][-back]


ORDERS = [
    "s8 G_0 y3 G_1:02 S_0 p8 G_1:26 V_0 rq1 S_1 V_1 V_2 V_3 V_4 V_5 v8 G_2 rq2 P_0 S_2 tl0 tl1 tq0 tl2 tq1 tq2 l1 P_1 "
    "tG0 tG1:02 tS0 tG1:26 tG2:02 tS1 tG2:26 g8 tV0:02 tS2 sm S_3 tV0:26 P_2 tV1 tP0 tV2 tP1 t20 tP2 t21 t22 l2 cy",
    "s8 G_0 y3 G_1:02 S_0 p8 G_1:26 V_0 rq1 S_1 V_1 V_2 V_3 V_4 V_5 v8 G_2 rq2 P_0 S_2 g8 tl0 S_3 tl1 tq0 tl2 tq1 tq2 l1 P_1 "
    "tG0 tG1:02 tS0 tG1:26 tG2:02 tS1 tG2:26 tV0:02 tS2 sm tV0:26 tV1 tP0 P_2:01 tV2 tP1 t20 P_2:12 tP2 t21 P_2:23 t22 l2 cy",
    "s8 G_0 y3 G_1:02 S_0 p8 G_1:26 V_0 rq1 S_1 V_1 V_2 V_3 V_4 V_5 v8 tl0 P_0 tl1 tq0 tl2 tq1 tq2 l1 G_2 rq2 tG0 S_2 "
    "tG1:02 tS0 tG1:26 P_1 tS1 tG2 g8 tV0:02 tS2 sm S_3 tV0:26 tV1 tP0 tV2 tP1 t20 P_2:01 tP2 t21 P_2:12 t22 l2 P_2:23 cy",
    "s8 G_0 y3 G_1:02 S_0 p8 G_1:26 V_0 rq1 S_1 V_1 V_2 V_3 V_4 V_5 v8 G_2 rq2 P_0 S_2 tl0 tl1 tq0 tl2 tq1 tq2 l1 P_1 "
    "tG0 tG1:02 tS0 tG1:26 tG2:02 tS1 tG2:26 tV0:02 tS2 sm tV0:26 P_2:01 tV1 P_2:12 tP0 P_2:23 tV2 tP1 t20 tP2 g8 t21 t22 l2 S_3 cy",
    "s8 G_0 y3 G_1:02 S_0 p8 G_1:26 V_0 rq1 S_1 V_1 V_2 V_3 V_4 V_5 v8 G_2 rq2 P_0 S_2 g8 tl0 S_3 tl1 tq0 tl2 tq1 tq2 l1 P_1 "
    "tG0 tG1:02 tS0 tG1:26 tG2:02 tS1 tG2:26 tV0:02 tS2 sm tV0:26 P_2:01 tV1 P_2:12 tP0 P_2:23 tV2 tP1 t20 tP2 t21 t22 l2 cy",
]


def gen_body(k, car, with_T=True):
    p = Prog()
    ldf = " nt" if OPT['ld_nt'] else ""
    pool = Pool(p, OPT['pool'])
    S = SPhase(p, k, pool, car)
    T = TPhase(p, k, 3, pool, lambda j: k.aT[j]) if with_T else None

    def t(f):
        if with_T:
            p.part = 'T'
            f()
            p.part = 'S'
    p.part = 'C'
    dm = []
    if with_T:
        p.salu("s_sub_u32", "s58", sO1, sO0)
        p.salu("s_subb_u32", "s59", "s58", 0)
        p.salu("s_sub_u32", "s56", sO2, sO1)
        p.salu("s_subb_u32", "s57", "s56", 0)
        p.salu("s_add_u32", sM0, sO2, sPL)
        for i in range(9):
            p.salu("s_add_u32", "m0", sM0, 1024 * i)
            dm.append(p.add('dma', "buffer_load_dwordx4 {}, " + SX + ", " + sB2 + " offen" + ldf + " lds", [k.goff[i]],
                            rd=[k.goff[i]], srd=['m0', sB2, 's6'], after=dm[-1:]))
    p.part = 'S'
    S.loadY(0, deadline=0)
    S.loadY(1, deadline=20)
    S.loadY(2, deadline=40)
    S.loadRQ(0, deadline=80)
    for tok in ORDERS[OPT['order']].split():
        c, arg = tok[:2], tok[2:]
        u = int(arg[0]) if arg else None
        rng = range(int(arg[2]), int(arg[3])) if len(arg) > 1 else None
        if c == 'G_':
            S.G(u, rng or range(6))
        elif c == 'S_':
            S.S(u)
        elif c == 'V_':
            S.V(u)
        elif c == 'P_':
            S.PV(u, rng or range(3))
        elif c == 's8':
            S.softmax48()
        elif c == 'p8':
            S.PV(3, rng or range(3), base=sBM)
            if not rng or rng[-1] == 2:
                p.salu("s_mov_b32", "s10", NBYTES)
        elif c == 'y3':
            S.loadY(3, release=last_mfma(p, 12))
            S.loadR(release=last_mfma(p, 8))
        elif c == 'cy':
            S.loadCarry(release=last_mfma(p, 14))
        elif c == 'rq':
            S.loadRQ(u, release=last_mfma(p, 10))
        elif c == 'g8':
            S.loadG48(release=last_mfma(p, 10))
        elif c == 'v8':
            S.loadV48(release=last_mfma(p, 10))
        elif c == 'tl':
            t(lambda: T.load([u], release=last_mfma(p, 10)))
        elif c == 'tq':
            t(lambda: T.q1(u))
        elif c == 'l1':
            t(lambda: T.ln1())
        elif c == 'tG':
            t(lambda: T.G(u, rng or range(6)))
        elif c == 'tS':
            t(lambda: T.S(u))
        elif c == 'sm':
            t(lambda: T.softmax())
        elif c == 'tV':
            t(lambda: T.V(u, rng or range(6)))
        elif c == 'tP':
            t(lambda: T.PV(u))
        elif c == 't2':
            t(lambda: T.q2(u))
        elif c == 'l2':
            t(lambda: T.ln2())
        else:
            raise ValueError(tok)
    if not with_T:
        S.softmax48()
        S.PV(3, base=sB0)
    if with_T:
        p.part = 'C'
        p.salu("s_mov_b32", sBM, sB0)
        for r, d in ((k.AT[0:2], sDT2), (k.AT[2:4], sDT2), (k.AS[0:2], sDS2), (k.AS[2:4], sDS2), (k.AE[0:2], sENT2)):
            p.valu("v_lshl_add_u64", r, r, 0, d)
        p.valu("v_add_u32", k.aRq[0], "s58", k.aRq[0])
        p.valu("v_add_u32", k.aR48[0], ENT, k.aR48[0])
        p.salu("s_mov_b32", sT0, sO0)
        p.salu("s_mov_b32", sO0, sO1)
        p.salu("s_mov_b32", sO1, sO2)
        p.salu("s_mov_b32", sO2, sT0)
        p.salu("s_mov_b32", sB0, sB1)
        p.salu("s_mov_b32", sB1, sB2)
        p.salu("s_add_u32", sWID, sWID, NWG)
        p.salu("s_cmp_lt_u32", None, sWID, NWIN)
        p.salu("s_cselect_b32", "s6", NBYTES, 0)
        p.salu("s_min_u32", sT1, sWID, NWIN - 1)
        winbase(p, sB2, sT1)
    bb = [i for i in p.ins if i.kind in MFMA]
    for i, d in enumerate(dm):
        kk = min((OPT['d0'] + i * OPT['dd']) // 4, len(bb) - 5)
        d.release, d.deadline = bb[kk], bb[kk + 4]
    return p, bb


def winbase(p, dst, w):
    p.salu("s_mul_hi_u32", sT2, w, 79536432)
    p.salu("s_mul_i32", sT3, sT2, 54)
    p.salu("s_sub_u32", sT3, w, sT3)
    p.salu("s_mul_i32", sT2, sT2, 7 * RS)
    p.salu("s_mul_i32", sT3, sT3, 1344)
    p.salu("s_add_u32", dst, sT2, sT3)


def hint(lst, release=None, deadline=None):
    for i in lst:
        if release is not None:
            i.release = release
        if deadline is not None:
            i.deadline = deadline


def gen_prologue(k):
    P = Prog()
    P.blks += [b for b in k.all if b is not k.WV]
    v0 = Blk('v0', 1, persistent=True)
    v0.base = 0
    P.blks.append(v0)
    tid = v0[0]
    p = P
    T = lambda n: p.v(n)[0]
    out = []

    def seg_end(sched, bb=()):
        ins = p.ins
        p.ins = []
        if sched:
            order, total = schedule(ins, list(bb), verbose=True)
            if OPT['dump'] == 3:
                print(" ".join(f"{i.t}:{i.kind}" for i in order))
        else:
            order = ins
        out.extend(order)
    R = lambda kind, text: p.ins.append(Raw(kind, text))
    R('salu', f"s_cmp_ge_u32 s2, {NWG}")
    R('branch', "s_cbranch_scc1 L_end")
    R('smem', "s_load_dwordx4 s[56:59], s[0:1], 0")
    R('smem', "s_load_dwordx4 s[60:63], s[0:1], 16")
    R('smem', "s_load_dwordx4 s[64:67], s[0:1], 32")
    lane, wv = T('lane'), T('wv')
    p.valu("v_and_b32", lane, 63, tid)
    p.valu("v_lshrrev_b32", wv, 6, tid)
    p.add('valu', "v_readfirstlane_b32 " + sWAVE + ", {}", [wv], rd=[wv], swr=[sWAVE])
    if OPT['pf']:
        pfa = T('pfa')
        R('salu', "s_getpc_b64 s[68:69]")
        p.valu("v_lshlrev_b32", pfa, 6, tid)
        R('label', "L_pf:")
        p.add('vld', "global_load_dword a250, {}, s[68:69]", [pfa], rd=[pfa])
        p.valu("v_min_u32", pfa, "L_end-L_pf-16384", pfa)
        R('salu', "s_add_u32 s68, s68, 16384")
        R('salu', "s_addc_u32 s69, s69, 0")
        p.add('vld', "global_load_dword a251, {}, s[68:69]", [pfa], rd=[pfa])
    n16, g4 = T('n16'), T('g4')
    p.valu("v_and_b32", n16, 15, lane)
    p.valu("v_lshrrev_b32", g4, 4, lane)
    a, b = T('a'), T('b')
    lin = T('lin')
    p.valu("v_lshlrev_b32", lin, 4, lane)
    gL, gR = p.v('gL', 3, align=1), p.v('gR', 3, align=1)
    q, pp, pos, sw, row = T('q'), T('pp'), T('pos'), T('sw'), T('row')
    c78 = T('c78')
    p.valu("v_mov_b32", c78, "0x78")
    p.valu("v_and_b32", a, 1, wv)
    p.add('valu', "v_cmp_eq_u32 s[70:71], 1, {}", [a], rd=[a], swr=['s70', 's71'])
    for i in range(3):
        p.valu("v_add_u32", q, 64 * i, lane)
        p.valu("v_mul_u32_u24", pp, 5462, q)
        p.valu("v_lshrrev_b32", pp, 16, pp)
        p.valu("v_mul_u32_u24", pos, 12, pp)
        p.valu("v_sub_u32", pos, q, pos)
        p.valu("v_lshrrev_b32", row, 2, pp)
        p.valu("v_lshlrev_b32", sw, 1, row)
        p.valu("v_lshrrev_b32", sw, sw, c78)
        p.valu("v_and_b32", sw, 3, sw)
        p.valu("v_xor_b32", pos, pos, sw)
        p.valu("v_lshlrev_b32", pos, 4, pos)
        p.valu("v_and_b32", a, 3, pp)
        p.valu("v_lshl_add_u32", a, row, 3, a)
        p.valu("v_mul_u32_u24", a, 576, a)
        p.valu("v_add_u32", gL[i], a, pos)
        p.valu("v_mul_u32_u24", a, 576, pp)
        p.valu("v_add_u32", a, a, pos)
        p.valu("v_add_u32", a, 192, a)
        p.valu("v_lshlrev_b32", b, 4, q)
        p.valu("v_cndmask_b32_e64", gR[i], a, b, "s[70:71]")
    p.salu("s_cmp_lt_u32", None, "s2", NWIN - 11 * NWG)
    p.salu("s_cselect_b32", sNWIN, 12, 11)
    winbase(p, sB0, "s2")
    p.salu("s_add_u32", sWID, "s2", NWG)
    winbase(p, sB1, sWID)
    p.salu("s_add_u32", sWID, sWID, NWG)
    winbase(p, sB2, sWID)
    p.salu("s_mov_b32", sBM, sB0)
    p.salu("s_mov_b32", sEPS, f32(C96))
    p.salu("s_mov_b32", sO0, 0)
    p.salu("s_mov_b32", sO1, BUFSZ)
    p.salu("s_mov_b32", sO2, 2 * BUFSZ)
    p.salu("s_mul_i32", sPL, sWAVE, PLANE)
    R('wait', "s_waitcnt lgkmcnt(0)")
    for d, s in (("s4", "s56"), ("s5", "s57"), ("s8", "s66"), ("s9", "s67")):
        p.salu("s_mov_b32", d, s)
    p.salu("s_mov_b32", "s6", NBYTES)
    p.salu("s_mov_b32", "s7", "0x00020000")
    p.salu("s_mov_b32", "s10", 0)
    p.salu("s_mov_b32", "s11", "0x00020000")
    p.salu("s_cmp_ge_u32", None, sWAVE, 2)
    p.salu("s_cselect_b32", "s12", "s62", "s58")
    p.salu("s_cselect_b32", "s13", "s63", "s59")
    p.salu("s_cselect_b32", "s16", "s64", "s60")
    p.salu("s_cselect_b32", "s17", "s65", "s61")
    p.salu("s_mov_b32", "s14", 55296)
    p.salu("s_mov_b32", "s15", "0x00020000")
    p.salu("s_mov_b32", "s18", 18432)
    p.salu("s_mov_b32", "s19", "0x00020000")
    p.salu("s_and_b32", sT0, sWAVE, 1)
    p.salu("s_cselect_b32", "s16", "s16", "s12")
    p.salu("s_cselect_b32", "s17", "s17", "s13")
    p.salu("s_cselect_b32", "s18", "s18", "s14")
    p.salu("s_mov_b32", sKB, 16 * 576)
    p.salu("s_cselect_b32", sKB, 3072, sKB)
    p.salu("s_mul_i32", sT1, sT0, 384)
    p.salu("s_mul_i32", sM0, sWAVE, 36864)
    seg_end(False)
    dm = []
    for kt in range(6):
        row_ = 32 * (kt >> 1) + 4 * (kt & 1)
        p.salu("s_add_u32", sKA, sT1, row_ * 576)
        for i in range(3):
            p.salu("s_add_u32", "m0", sM0, 1024 * (3 * kt + i))
            dm.append(p.add('dma', f"buffer_load_dwordx4 {{}}, {SW}, {sKA} offen lds", [gL[i]], rd=[gL[i]], srd=['m0', sKA],
                            after=dm[-1:], deadline=0))
    for ct in range(6):
        p.salu("s_mul_i32", sKA, sKB, ct)
        for i in range(3):
            p.salu("s_add_u32", "m0", sM0, 18432 + 1024 * (3 * ct + i))
            dm.append(p.add('dma', f"buffer_load_dwordx4 {{}}, {SW2}, {sKA} offen lds", [gR[i]], rd=[gR[i]], srd=['m0', sKA],
                            after=dm[-1:], deadline=0))
    cmp = lambda op, pair, c, v: p.add('valu', f"{op} {pair}, {c}, {{}}", [v], rd=[v], srd=Prog._sregs([c]), swr=Prog._sregs([pair]))
    sel = lambda d, f, t_, pair: p.valu("v_cndmask_b32_e64", d, f, t_, pair)
    PA, PB = "s[68:69]", "s[70:71]"

    def sigma(d, x):
        p.valu("v_and_b32", d, 3, x)
        p.valu("v_lshlrev_b32", d, 1, d)
        p.valu("v_lshrrev_b32", d, d, c78)

    def pixoff(d, px):
        p.valu("v_mul_u32_u24", row, 9363, px)
        p.valu("v_lshrrev_b32", row, 16, row)
        p.valu("v_mul_u32_u24", row, RS - 7 * 192, row)
        p.valu("v_mul_u32_u24", d, 192, px)
        p.valu("v_add_u32", d, d, row)
    tbase, oob, tt, ppx = T('tbase'), T('oob'), T('tt'), T('ppx')
    p.salu("s_mul_i32", sT2, sWAVE, TS)
    p.valu("v_mov_b32", tbase, sT2)
    p.valu("v_mov_b32", oob, OOB)
    p.valu("v_and_b32", tt, 3, n16)
    p.valu("v_lshrrev_b32", ppx, 2, n16)
    for i in range(9):
        p.valu("v_add_u32", q, 64 * i, lane)
        p.valu("v_mul_u32_u24", pp, 5462, q)
        p.valu("v_lshrrev_b32", pp, 16, pp)
        p.valu("v_mul_u32_u24", pos, 12, pp)
        p.valu("v_sub_u32", pos, q, pos)
        p.valu("v_lshrrev_b32", a, 2, pp)
        sigma(sw, a)
        p.valu("v_xor_b32", sw, sw, wv)
        p.valu("v_and_b32", sw, 3, sw)
        p.valu("v_xor_b32", pos, pos, sw)
        pixoff(a, pp)
        p.valu("v_lshl_add_u32", b, pos, 4, tbase)
        p.valu("v_add_u32", k.goff[i], a, b)
    p.valu("v_add_u32", k.aStg[0], sPL, lin)
    cmp("v_cmp_eq_u32", PB, 0, n16)
    p.valu("v_lshl_add_u32", a, g4, 4, tbase)
    p.valu("v_add_u32", a, 6 * RS + 6 * 192, a)
    sel(k.gst3[0], oob, a, PB)
    e48 = T('e48')
    p.valu("v_mul_u32_u24", e48, 192, wv)
    p.valu("v_add_u32", e48, TAB, e48)
    p.valu("v_lshl_add_u32", b, g4, 4, e48)
    cmp("v_cmp_eq_u32", PA, 0, tt)
    sel(k.aY48[0], oob, b, PA)
    p.valu("v_mov_b32", a, "0x3f803f80")
    for i in range(4):
        sel(k.ones[i], 0, a, PA)
    p.add('valu', f"v_cmp_eq_u32 {PA}, {{}}, {{}}", [tt, g4], rd=[tt, g4], swr=['s68', 's69'])
    p.valu("v_lshl_add_u32", a, ppx, 3, e48)
    p.valu("v_add_u32", a, T_V, a)
    sel(k.aV48[0], oob, a, PA)
    p.valu("v_lshlrev_b32", a, 2, wv)
    p.valu("v_add_u32", k.aR48[0], TAB + T_R, a)
    rb = T('rb')
    p.valu("v_mul_u32_u24", rb, 192, wv)
    p.valu("v_add_u32", rb, RTAB, rb)
    p.valu("v_lshl_add_u32", k.aRrow[0], g4, 4, rb)
    p.valu("v_lshl_add_u32", k.aRcol[0], n16, 2, rb)
    cmp("v_cmp_eq_u32", PA, 3, ppx)
    sel(a, ppx, 0, PA)
    p.valu("v_lshl_add_u32", a, a, 6, k.aRrow[0])
    cmp("v_cmp_eq_u32", PA, 0, tt)
    sel(k.aRq[0], oob, a, PA)
    sigma(sw, ppx)
    p.valu("v_xor_b32", sw, sw, g4)
    afr = T('afr')
    p.valu("v_and_b32", a, 3, sw)
    p.valu("v_mul_u32_u24", b, 192, n16)
    p.valu("v_lshl_add_u32", a, a, 4, b)
    p.valu("v_add_u32", afr, sM0, a)
    p.valu("v_xor_b32", sw, sw, wv)
    p.valu("v_and_b32", a, 3, sw)
    p.valu("v_lshl_add_u32", a, a, 4, b)
    p.valu("v_add_u32", k.aY[0], sPL, a)
    lo16, hi16 = T('lo16'), T('hi16')
    p.valu("v_mov_b32", lo16, "0xffff")
    p.valu("v_mov_b32", hi16, "0xffff0000")
    for e in range(2):
        cmp("v_cmp_eq_u32", PA, 2 * e, g4)
        cmp("v_cmp_eq_u32", PB, 2 * e + 1, g4)
        sel(a, 0, lo16, PA)
        sel(k.mk48[e], a, hi16, PB)
    lo = p.v('lo')
    ldf = " nt" if OPT['ld_nt'] else ""
    aT3, aV3, a1 = Blk('aT3', 1, persistent=True), Blk('aV3', 1, persistent=True), Blk('a1', 1, liveout=True)
    aT3.base, aV3.base, a1.base = k.low - 1, k.low - 2, k.low - 3
    X3 = Blk('X3', 20, liveout=True)
    X3.base = 2
    p.blks += [aT3, aV3, a1, X3]
    ii, ww = T('ii'), T('ww')
    p.valu("v_lshl_add_u32", ii, wv, 2, ppx)
    p.valu("v_mul_u32_u24", ww, NWG, ii)
    p.valu("v_add_u32", ww, "s2", ww)
    p.salu("s_mov_b32", sT2, 79536432)
    p.valu("v_mul_hi_u32", a, ww, sT2)
    p.valu("v_mul_u32_u24", b, 54, a)
    p.valu("v_sub_u32", b, ww, b)
    p.salu("s_mov_b32", sT3, 7 * RS)
    p.valu("v_mul_lo_u32", a, a, sT3)
    p.valu("v_mul_u32_u24", b, 1344, b)
    p.salu("s_mov_b32", sT2, TS)
    p.valu("v_mul_lo_u32", q, tt, sT2)
    p.valu("v_add3_u32", a, a, b, q)
    p.valu("v_add_u32", a, 6 * RS + 6 * 192, a)
    p.valu("v_lshl_add_u32", a, g4, 4, a)
    cmp("v_cmp_gt_u32", PA, sNWIN, ii)
    sel(lo[0], oob, a, PA)
    xl = [Ins('vld', f"buffer_load_dwordx4 a[{144 + 4 * s_}:{147 + 4 * s_}], {{}}, {SX}, 0 offen offset:{64 * s_}" + ldf, [lo[0]], [], [lo[0]])
          for s_ in range(3)]
    p.valu("v_mul_u32_u24", a, ENT, ii)
    p.valu("v_mul_u32_u24", b, 192, tt)
    p.valu("v_add_u32", a, TAB, a)
    p.valu("v_add_u32", a, a, b)
    cmp("v_cmp_gt_u32", PA, 12, ii)
    p.valu("v_lshl_add_u32", b, g4, 4, a)
    sel(aT3[0], oob, b, PA)
    p.valu("v_lshl_add_u32", b, g4, 3, a)
    sel(aV3[0], oob, b, PA)
    for j in range(3):
        p.valu("v_mul_u32_u24", pp, 12, wv)
        p.valu("v_add3_u32", pp, pp, ppx, 4 * j)
        p.valu("v_lshrrev_b32", a, 2, pp)
        sigma(sw, a)
        p.valu("v_xor_b32", sw, sw, tt)
        p.valu("v_xor_b32", sw, sw, g4)
        p.valu("v_and_b32", sw, 3, sw)
        p.valu("v_mul_u32_u24", a, PLANE, tt)
        p.valu("v_mul_u32_u24", b, 192, pp)
        p.valu("v_add_u32", a, a, b)
        p.valu("v_lshl_add_u32", k.aT[j], sw, 4, a)
    jj = T('jj')
    p.valu("v_sub_u32", jj, ppx, g4)
    p.valu("v_and_b32", jj, 3, jj)
    p.valu("v_mul_u32_u24", a, 12, wv)
    p.valu("v_lshl_add_u32", a, jj, 2, a)
    p.valu("v_add_u32", a, a, g4)
    p.valu("v_mul_u32_u24", b, 48, tt)
    p.valu("v_add_u32", a, a, b)
    p.valu("v_lshlrev_b32", a, 2, a)
    p.valu("v_add_u32", a, RTAB, a)
    p.valu("v_lshl_add_u32", b, wv, 2, g4)
    cmp("v_cmp_gt_u32", PA, 12, b)
    p.valu("v_mul_u32_u24", b, ENT, b)
    p.valu("v_lshl_add_u32", b, tt, 2, b)
    p.valu("v_add_u32", b, TAB + T_R, b)
    sel(b, oob, b, PA)
    for j in range(1, 4):
        cmp("v_cmp_ne_u32", MRG[j], j, jj)
        cmp("v_cmp_eq_u32", SEL[j], j, tt)
    sel(k.aRw[0], b, a, MRG[3])
    cmp("v_cmp_eq_u32", PA, 0, jj)
    sel(k.diag[0], 0, -1, PA)
    one_lo, one_hi = T('one_lo'), T('one_hi')
    p.valu("v_mov_b32", one_lo, "0x3f80")
    p.valu("v_mov_b32", one_hi, "0x3f800000")
    sel(a, one_lo, one_hi, SEL[1])
    sel(a, a, 0, SEL[2])
    sel(a, a, 0, SEL[3])
    p.valu("v_and_b32", k.IZ[2], a, k.diag[0])
    sel(a, 0, one_lo, SEL[2])
    sel(a, a, one_hi, SEL[3])
    p.valu("v_and_b32", k.IZ[3], a, k.diag[0])
    for i in (0, 1, 4, 5):
        p.valu("v_mov_b32", k.IZ[i], 0)
    mpos = T('mpos')
    p.valu("v_lshrrev_b32", a, 3, n16)
    p.valu("v_lshlrev_b32", a, 4, a)
    p.valu("v_and_b32", b, 7, n16)
    p.valu("v_add_u32", a, a, b)
    p.valu("v_and_b32", b, 1, g4)
    p.valu("v_lshl_add_u32", a, b, 3, a)
    p.valu("v_lshrrev_b32", b, 1, g4)
    p.valu("v_lshl_add_u32", a, b, 5, a)
    p.valu("v_lshlrev_b32", mpos, 4, a)
    p.valu("v_add_u32", a1[0], F_AS, mpos)
    p.valu("v_add_u32", k.aW[0], F_BS, mpos)
    aFw = T('aFw')
    p.valu("v_lshrrev_b32", a, 3, n16)
    p.valu("v_lshl_add_u32", aFw, a, 2, tt)
    p.valu("v_bfe_u32", q, n16, 2, 1)
    p.valu("v_and_b32", a, 1, g4)
    p.valu("v_lshrrev_b32", b, 1, g4)
    p.valu("v_lshl_add_u32", aFw, a, 3, aFw)
    p.valu("v_lshl_add_u32", aFw, b, 5, aFw)
    p.valu("v_lshl_add_u32", aFw, q, 6, aFw)
    p.valu("v_lshlrev_b32", aFw, 4, aFw)
    p.salu("s_mov_b32", sT2, F_AT)
    p.salu("s_cmp_eq_u32", None, sWAVE, 1)
    p.salu("s_cselect_b32", sT2, F_BT, sT2)
    p.salu("s_cmp_eq_u32", None, sWAVE, 2)
    p.salu("s_cselect_b32", sT2, F_AS, sT2)
    p.salu("s_cmp_eq_u32", None, sWAVE, 3)
    p.salu("s_cselect_b32", sT2, F_BS, sT2)
    p.valu("v_add_u32", aFw, sT2, aFw)
    atr = T('atr')
    p.valu("v_lshlrev_b32", a, 3, g4)
    p.valu("v_add_u32", a, a, ppx)
    p.valu("v_mul_u32_u24", a, 192, a)
    p.valu("v_lshl_add_u32", a, tt, 3, a)
    p.valu("v_add_u32", atr, sM0, a)
    seg_end(True)
    kap_a, kap_b = math.sqrt(96) * math.log2(math.e), math.sqrt(96)
    p.salu("s_cmp_lg_u32", None, sT0, 0)
    p.salu("s_mov_b32", sKA, f32(kap_a))
    p.salu("s_cselect_b32", sKA, f32(kap_b), sKA)
    p.salu("s_cselect_b32", sKB, 0, f32(-kap_a / 96))
    R('wait', "s_waitcnt vmcnt(18)")
    for f in range(18):
        p.add('dsr', f"ds_read_b128 a[{4 * f}:{4 * f + 3}], {{}} offset:{3072 * (f // 3) + 64 * (f % 3)}", [afr], rd=[afr])
    R('wait', "s_waitcnt vmcnt(0)")
    R('branch', "s_cbranch_scc1 L_fold_b")
    for f in range(18):
        p.add('dsr', f"ds_read_b128 a[{72 + 4 * f}:{75 + 4 * f}], {{}} offset:{18432 + 3072 * (f // 3) + 64 * (f % 3)}", [afr], rd=[afr])
    R('branch', "s_branch L_fold_d")
    R('label', "L_fold_b:")
    for ct in range(6):
        for si in range(3):
            q0 = 72 + 4 * (3 * ct + si)
            for e in range(2):
                p.add('dsr', f"ds_read_b64_tr_b16 a[{q0 + 2 * e}:{q0 + 2 * e + 1}], {{}} offset:{18432 + (32 * si + 4 * e) * 192 + 32 * ct}", [atr], rd=[atr])
    R('label', "L_fold_d:")
    R('wait', "s_waitcnt lgkmcnt(0)")
    R('barrier', "s_barrier")
    seg_end(False)
    dm = []
    for i in range(9):
        p.salu("s_add_u32", "m0", sPL, 1024 * i)
        dm.append(p.add('dma', "buffer_load_dwordx4 {}, " + SX + ", " + sB0 + " offen" + ldf + " lds", [k.goff[i]],
                        rd=[k.goff[i]], srd=['m0', sB0], after=dm[-1:], deadline=0))
    for i in xl:
        i.after, i.deadline = dm[-1:], 0
        dm.append(i)
        p.ins.append(i)
    D = [[p.v(f"D{kt}_{ct}", 4) for ct in range(6)] for kt in range(6)]
    bb = []
    cs = [p.v(f"cs{ct}", 2) for ct in range(6)]
    rs = [p.v(f"rs{kt}", 4) for kt in range(6)]
    c2 = p.v("c2", 2)
    p.valu("v_mov_b32", c2[0], sKA)
    p.valu("v_mov_b32", c2[1], sKB)
    pk = lambda op, d, *s, mods="": p.valu(op, d, *s, mods=mods, release=bb[-1])
    NPL = 4
    for ct in range(6):
        for kt in range(6):
            for si in range(3):
                qa, qb = 4 * (3 * kt + si), 72 + 4 * (3 * ct + si)
                bb.append(p.mfma('med', D[kt][ct].all, f"a[{qa}:{qa + 3}]", f"a[{qb}:{qb + 3}]", D[kt][ct].all if si else 0))
    for ct in range(6):
        if ct < NPL:
            p.valu("v_add_f32", cs[ct][0], D[0][ct][0], D[0][ct][2])
            p.valu("v_add_f32", cs[ct][1], D[0][ct][1], D[0][ct][3])
            for kt in range(1, 6):
                for r in range(4):
                    p.valu("v_add_f32", cs[ct][r & 1], cs[ct][r & 1], D[kt][ct][r])
            if ct:
                for kt in range(6):
                    for r in range(4):
                        p.valu("v_add_f32", rs[kt][r], D[kt][0][r] if ct == 1 else rs[kt][r], D[kt][ct][r])
        else:
            pk("v_pk_add_f32", cs[ct].all, D[0][ct][0:2], D[0][ct][2:4])
            for kt in range(1, 6):
                pk("v_pk_add_f32", cs[ct].all, cs[ct].all, D[kt][ct][0:2])
                pk("v_pk_add_f32", cs[ct].all, cs[ct].all, D[kt][ct][2:4])
            for kt in range(6):
                for h in range(2):
                    pk("v_pk_add_f32", rs[kt][2 * h:2 * h + 2], rs[kt][2 * h:2 * h + 2], D[kt][ct][2 * h:2 * h + 2])
        p.valu("v_add_f32", cs[ct][0], cs[ct][0], cs[ct][1])
        for sw_ in (p.swap32, p.swap16):
            p.valu("v_mov_b32", cs[ct][1], cs[ct][0])
            sw_(cs[ct][0], cs[ct][1])
            p.valu("v_add_f32", cs[ct][0], cs[ct][0], cs[ct][1])
    tot = p.v("tot", 2)
    p.valu("v_add_f32", tot[0], cs[0][0], cs[1][0])
    for ct in range(2, 6):
        p.valu("v_add_f32", tot[0], tot[0], cs[ct][0])
    for rot in (8, 4, 2, 1):
        for kt in range(6):
            for r in range(4):
                p.valu("v_add_f32_dpp", rs[kt][r], rs[kt][r], rs[kt][r], dpp=True, mods=f"row_ror:{rot} row_mask:0xf bank_mask:0xf")
        p.valu("v_add_f32_dpp", tot[0], tot[0], tot[0], dpp=True, mods=f"row_ror:{rot} row_mask:0xf bank_mask:0xf")
    p.valu("v_mul_f32", tot[0], f32(-1.0 / 96), tot[0])
    p.valu("v_mul_f32", tot[0], tot[0], c2[1])
    p.valu("v_mul_f32", tot[1], f32(-1.0 / 96), c2[0])
    for ct in range(6):
        p.valu("v_fma_f32", cs[ct][0], cs[ct][0], tot[1], tot[0])
    for kt in range(6):
        for h in range(2):
            pk("v_pk_mul_f32", rs[kt][2 * h:2 * h + 2], rs[kt][2 * h:2 * h + 2], c2.all, mods="op_sel:[0,1] op_sel_hi:[1,1]")
    for s in range(3):
        for ct in range(6):
            o = p.v(f"fo{s}_{ct}", 4)
            for e in range(2):
                kt = 2 * s + e
                for h in range(2):
                    d = D[kt][ct][2 * h:2 * h + 2]
                    pk("v_pk_fma_f32", d, d, c2.all, cs[ct].all, mods="op_sel_hi:[1,0,0]")
                    pk("v_pk_add_f32", d, d, rs[kt][2 * h:2 * h + 2])
                    p.valu("v_cvt_pk_bf16_f32", o[2 * e + h], D[kt][ct][2 * h], D[kt][ct][2 * h + 1])
            p.dsw(aFw, o.all, off=(ct >> 1) * 6144 + s * 2048 + (ct & 1) * 256, deadline=520 + 17 * (6 * s + ct))
    seg_end(True, bb)
    R('wait', "s_waitcnt lgkmcnt(0) vmcnt(0)")
    for i in range(12):
        d = X3[2 + 6 * (i >> 2) + (i & 3)]
        p.add('valu', f"v_accvgpr_read_b32 {{}}, a{144 + i}", [d], wr=[d])
    R('barrier', "s_barrier")
    seg_end(False)
    for t_, i in enumerate(out):
        i.t = t_
    assert allocate(out, p.blks, verbose=True)
    seq, _ = insert_waits(out, hoist=False)
    seq, _ = fix_hazards(seq)
    print(f"  prologue: {len(seq)} instr, estimate {estimate(seq) * 4} cycles")
    return seq, dict(X3=X3, aT3=aT3, aV3=aV3, a1=a1)


def gen_first(k, pr):
    p = Prog()
    aT3, aV3, a1 = pr['aT3'], pr['aV3'], pr['a1']
    a1.persistent = True
    p.blks += k.all + [aT3, aV3, a1]
    pool = Pool(p, 6)
    T = TPhase(p, k, 4, pool, lambda j: k.aT[j] if j < 3 else aT3[0])
    T.X[3].base, T.X[3].carried = pr['X3'].base, True
    wr = {}

    def wread(name, addr, off):
        wr[name] = p.add('dsr', f"ds_read_b128 {name}, {{}} offset:{off}", [addr], rd=[addr], swr=[name])
        return wr[name]
    T.load(range(3), deadline=0)
    early = [wread(aAT(m, s), a1[0], medoff(m, s) + F_AT - F_AS) for m in range(6) for s in range(3)]
    late = [wread(aBT(m, s), a1[0], medoff(m, s) + F_BT - F_AS) for m in range(6) for s in range(3)]
    late += [wread(aAS(m, s), a1[0], medoff(m, s)) for m in range(6) for s in range(3)]
    late += [wread(aBS(m, s), k.aW[0], medoff(m, s)) for m in range(6) for s in range(3) if 3 * m + s < 10]
    for f in range(10, 10 + OPT['wv']):
        late.append(p.dsr(k.WV[4 * (f - 10):4 * (f - 10) + 4], k.aW[0], off=medoff(f // 3, f % 3)))
    ldf = " nt" if OPT['ld_nt'] else ""
    dm = []
    for i in range(9):
        p.salu("s_add_u32", "m0", sPL, BUFSZ + 1024 * i)
        dm.append(p.add('dma', "buffer_load_dwordx4 {}, " + SX + ", " + sB1 + " offen" + ldf + " lds", [k.goff[i]],
                        rd=[k.goff[i]], srd=['m0', sB1], after=dm[-1:], deadline=40 * i))
    bar = p.add('barrier', "s_barrier", [], after=early + late)
    bar.wait_for = early + late
    n0 = len(p.ins)
    for j in (3, 0, 1, 2):
        T.q1(j)
    T.ln1()
    for m in range(6):
        for j in range(4):
            T.G(j, [m])
    for j in range(4):
        T.S(j)
    T.softmax()
    T.V(3)
    T.V(0)
    T.PV(3)
    T.V(1)
    T.q2(3)
    T.PV(0)
    G48 = p.vm("G48", 12, 4)
    for m in range(6):
        acc = pool.get()
        for s in range(3):
            p.mfma('med', acc.all, aAS(m, s), T.YP[3][4 * s:4 * s + 4], acc.all if s else 0)
        p.valu("v_cvt_pk_bf16_f32", G48[2 * m], acc[0], acc[1])
        p.valu("v_cvt_pk_bf16_f32", G48[2 * m + 1], acc[2], acc[3])
    for s in range(3):
        T.ywr.append(p.dsw(aT3[0], G48[4 * s:4 * s + 4], off=T_G + 64 * s))
    T.V(2)
    T.PV(1)
    T.q2(0)
    T.PV(2)
    T.q2(1)
    for m in range(6):
        acc = pool.get()
        o = p.v(f"V48_{m}", 2)
        W = wBS(p, k, m)
        for s in range(3):
            p.mfma('med', acc.all, W[s], T.YP[3][4 * s:4 * s + 4], acc.all if s else 0)
        p.valu("v_cvt_pk_bf16_f32", o[0], acc[0], acc[1])
        p.valu("v_cvt_pk_bf16_f32", o[1], acc[2], acc[3])
        T.ywr.append(p.dsw(aV3[0], o.all, off=T_V + 32 * m))
        if m == 1:
            T.q2(2)
            T.ln2()
    for i in p.ins[n0:]:
        if i.kind == 'med':
            for o in i.ops[1:3]:
                if isinstance(o, str) and o in wr:
                    i.srd.append(o)
                    i.wait_for = [wr[o]]
    for i in T.ywr:
        i.after.append(bar)
    for j in range(3):
        p.valu("v_add_u32", k.aT[j], BUFSZ, k.aT[j])
    a = p.v("a")[0]
    p.valu("v_add_u32", k.aRw[0], BUFSZ, k.aRw[0])
    p.valu("v_mov_b32", a, OOB)
    p.valu("v_cndmask_b32_e64", k.aRw[0], a, k.aRw[0], MRG[3])
    bb = [i for i in p.ins if i.kind in MFMA]
    hint(early, release=bb[0])
    for n_, i in enumerate(late):
        i.release, i.deadline = bb[14 + 3 * n_ // 2], bb[44 + 3 * n_ // 2]
    order, total = schedule(p.ins, bb, verbose=True, long_asap=True)
    if OPT['dump'] == 2:
        dump_sched(order)
    assert allocate(order, p.blks, verbose=True)
    seq, _ = insert_waits(order)
    seq, n = fix_hazards(seq)
    print(f"  first: {len(seq)} instr, nops {n}, estimate {estimate(seq) * 4} cycles")
    return seq


STAMP_N = [0]


def stamp(L, idx_text=None):
    if not OPT['stamp']:
        return
    L.append("    s_memtime s[72:73]")
    L.append("    s_memrealtime s[74:75]")
    L.append("    s_waitcnt lgkmcnt(0)")
    L.append("    v_accvgpr_read_b32 v0, a255")
    L.append("    v_mov_b32 v0, s72")
    L.append("    s_nop 1")
    L.append("    buffer_store_dword v0, off, s[76:79], s80")
    L.append("    s_nop 1")
    L.append("    v_mov_b32 v0, s74")
    L.append("    s_nop 1")
    L.append("    buffer_store_dword v0, off, s[76:79], s80 offset:4")
    L.append("    s_add_u32 s80, s80, 8")


HELD = []


def stamp_hold(L):
    if not OPT['stamp']:
        return
    r = 84 + 2 * len(HELD)
    HELD.append(r)
    L.append("    s_memtime s[72:73]")
    L.append("    s_memrealtime s[74:75]")
    L.append("    s_waitcnt lgkmcnt(0)")
    L.append(f"    s_mov_b32 s{r}, s72")
    L.append(f"    s_mov_b32 s{r + 1}, s74")


def stamp_flush(L):
    for r in HELD:
        L.append(f"    v_mov_b32 v0, s{r}")
        L.append("    s_nop 1")
        L.append("    buffer_store_dword v0, off, s[76:79], s80")
        L.append("    s_nop 1")
        L.append(f"    v_mov_b32 v0, s{r + 1}")
        L.append("    s_nop 1")
        L.append("    buffer_store_dword v0, off, s[76:79], s80 offset:4")
        L.append("    s_add_u32 s80, s80, 8")


def dump_sched(order):
    line = ""
    for i in order:
        if i.kind in MFMA:
            print(line)
            line = f"{i.t:5d} {i.part:2s} {i.kind} {i.wr[0][0].name:8s}|"
        else:
            nm = i.wr[0][0].name if i.wr else (i.rd[-1][0].name if i.rd else '')
            line += f" {i.fmt.split()[0].replace('v_', '').replace('_f32', '').replace('_b32', '')[:7]}:{nm}"
    print(line)


def build(k, car, with_T, tail):
    p, bb = gen_body(k, car, with_T)
    p.blks += k.all
    order, total = schedule(p.ins, bb, verbose=True, lookahead=OPT['lookahead'], pace=OPT['pace'] / 100.0, long_asap=True)
    if OPT['dump'] == 1 and with_T:
        dump_sched(order)
    assert allocate(order, p.blks, verbose=2), "register allocation failed"
    seq, _ = insert_waits(order)
    seq += tail
    return seq


def main(path):
    RES['vm_st'] = OPT['vmst']
    k = K()
    pro, pr = gen_prologue(k)
    first = gen_first(k, pr)
    tail = [Raw('salu', f"s_sub_u32 {sCNT}, {sCNT}, 1"), Raw('salu', f"s_cmp_lg_u32 {sCNT}, 0"),
            Raw('wait', "VMWAIT"), Raw('barrier', "s_barrier"), Raw('branch', "s_cbranch_scc1 L_loop")]
    car = {}
    loop = build(k, car, True, tail)
    vm = [i for i in loop if i.kind in ('dma', 'vst', 'vld')]
    younger = len(vm) - 1 - max(n for n, i in enumerate(vm) if i.kind == 'dma')
    for n, i in enumerate(loop):
        if i.kind == 'wait' and i.fmt == "VMWAIT":
            loop[n] = Raw('wait', f"s_waitcnt vmcnt({younger}) lgkmcnt(0)")
    loop, n = fix_hazards(loop, wrap=loop)
    print(f"  loop: {len(loop)} instr, nops {n}, estimate {estimate(loop) * 4} cycles, vmcnt({younger})")
    if OPT['exp'] == 3:
        loop = loop[:-2] + [Raw('nop', "s_nop 15", n=16) for _ in range(12)] + loop[-2:]
    e0 = build(k, car, False, [])
    e0, n = fix_hazards(e0, wrap=loop)
    print(f"  last: {len(e0)} instr, nops {n}, estimate {estimate(e0) * 4} cycles")
    e1 = []
    L = []
    hdr = open(os.path.join(os.path.dirname(os.path.abspath(__file__)), "header.txt")).read().rstrip("\n")
    L.append(hdr)
    L.append(f"; @launch grid=({NWG},1,1) block=(256,1,1) lds={LDS_BYTES}")
    L.append(f""".amdgcn_target "amdgcn-amd-amdhsa--gfx950"
.text
.globl {NAME}_kernel
.p2align 8
.type {NAME}_kernel,@function
{NAME}_kernel:""")
    em = lambda seq: [L.append(("" if i.kind == 'label' else "    ") + i.text()) for i in seq]
    if OPT['stamp']:
        L.append("""    s_memtime s[72:73]
    s_memrealtime s[74:75]
    s_load_dwordx2 s[76:77], s[0:1], 56
    v_lshrrev_b32 v1, 6, v0
    s_mov_b32 s78, 0x1000000
    s_mov_b32 s79, 0x00020000
    v_readfirstlane_b32 s81, v1
    s_lshl_b32 s80, s2, 2
    s_add_u32 s80, s80, s81
    s_lshl_b32 s80, s80, 8""")
        first_wait = True
        for i in pro:
            L.append(("" if i.kind == 'label' else "    ") + i.text())
            if first_wait and i.text() == "s_waitcnt lgkmcnt(0)":
                first_wait = False
                L.append("    s_mov_b32 s84, s72\n    s_mov_b32 s85, s74")
                HELD.append(84)
                stamp_hold(L)
            elif i.kind == 'barrier' or i.text().startswith("s_waitcnt vmcnt(") or getattr(i, 'stampme', False):
                stamp_hold(L)
    else:
        em(pro)
    em(first)
    L.append(f"    s_sub_u32 {sCNT}, {sNWIN}, 1")
    L.append(f"    s_mov_b32 s60, {ENT}")
    L.append(f"    s_mov_b32 s61, {ENT}")
    L.append("    s_waitcnt vmcnt(0) lgkmcnt(0)")
    L.append("    s_barrier")
    stamp_flush(L)
    L.append("    s_nop 7")
    L.append(".p2align 6")
    L.append("L_loop:")
    stamp(L)
    em(loop)
    stamp(L)
    em(e0)
    stamp(L)
    em(e1)
    stamp(L)
    if OPT['stamp']:
        L.append("    s_waitcnt vmcnt(0)")
    stamp(L)
    L.append("L_end:")
    L.append("    s_endpgm")
    L.append(f""".section .rodata,"a"
.p2align 6
.amdhsa_kernel {NAME}_kernel
  .amdhsa_next_free_vgpr 512
  .amdhsa_next_free_sgpr 102
  .amdhsa_accum_offset 256
  .amdhsa_group_segment_fixed_size 0
  .amdhsa_kernarg_size 64
  .amdhsa_user_sgpr_count 2
  .amdhsa_user_sgpr_kernarg_segment_ptr 1
  .amdhsa_system_sgpr_workgroup_id_x 1
.end_amdhsa_kernel""")
    open(path, "w").write("\n".join(L) + "\n")


if __name__ == "__main__":
    for a in sys.argv[2:]:
        kk, vv = a.split("=")
        OPT[kk] = type(OPT[kk])(int(vv))
    main(sys.argv[1] if len(sys.argv) > 1 else f"cdna_kernels/{NAME}.s")
```

```python
import random

PASSES = {'big': 8, 'med': 4}
MFMA = ('big', 'med')
VALU = ('valu', 'trans', 'swap')
MEM = ('dsr', 'dsw', 'dma', 'vst', 'vld')
SCALAR = ('salu', 'wait', 'nop', 'barrier', 'branch', 'label', 'smem')


class Blk:
    def __init__(self, name, size, persistent=False, carried=False, align=None, liveout=False):
        self.name, self.size = name, size
        self.liveout = liveout
        self.persistent, self.carried = persistent, carried
        self.align = align if align else (2 if size > 1 else 1)
        self.base = None

    def __getitem__(self, i):
        if isinstance(i, slice):
            a = i.start or 0
            b = self.size if i.stop is None else i.stop
            assert 0 <= a < b <= self.size, (self.name, a, b)
            return Reg(self, a, b - a)
        assert 0 <= i < self.size, (self.name, i)
        return Reg(self, i, 1)

    @property
    def all(self):
        return Reg(self, 0, self.size)

    def __repr__(self):
        return f"<{self.name}:{self.size}@{self.base}>"


class Reg:
    def __init__(self, blk, off, n):
        self.blk, self.off, self.n = blk, off, n

    def elems(self):
        return [(self.blk, self.off + i) for i in range(self.n)]

    def __getitem__(self, i):
        if isinstance(i, slice):
            a = i.start or 0
            b = self.n if i.stop is None else i.stop
            return Reg(self.blk, self.off + a, b - a)
        return Reg(self.blk, self.off + i, 1)

    def text(self):
        a = self.blk.base + self.off
        if self.n > 1:
            assert a % 2 == 0, (self.blk, self.off, self.n)
            return f"v[{a}:{a + self.n - 1}]"
        return f"v{a}"


class Multi:
    def __init__(self, blks):
        self.blks = blks
        self.c = blks[0].size

    def __getitem__(self, i):
        if isinstance(i, slice):
            a, b = i.start, i.stop
            assert a // self.c == (b - 1) // self.c
            return self.blks[a // self.c][a % self.c: a % self.c + (b - a)]
        return self.blks[i // self.c][i % self.c]


class Ins:
    _n = 0

    def __init__(self, kind, fmt, ops, wr, rd, swr=(), srd=(), part=None, after=(), dur=None, dpp=(), srcc=None,
                 release=None, deadline=None, acc=False):
        self.kind, self.fmt, self.ops = kind, fmt, ops
        self.wr = [e for r in wr for e in r.elems()]
        self.rd = [e for r in rd for e in r.elems()]
        self.swr, self.srd = list(swr), list(srd)
        self.part = part
        self.after = list(after)
        self.dpp = [e for r in dpp for e in r.elems()]
        self.srcc = srcc
        self.acc = acc
        self.release = release
        self.deadline = deadline
        if dur is None:
            dur = {'trans': 2, 'swap': 2, 'big': 2, 'med': 2, 'vst': 6}.get(kind, 1)
        self.dur = dur
        self.id = Ins._n
        Ins._n += 1
        self.t = None

    def text(self):
        return self.fmt.format(*[o.text() if isinstance(o, Reg) else o for o in self.ops])

    def __repr__(self):
        return f"<{self.kind} {self.fmt} #{self.id}>"


class Prog:
    def __init__(self):
        self.ins = []
        self.blks = []
        self.part = None

    def v(self, name, size=1, **kw):
        b = Blk(name, size, **kw)
        self.blks.append(b)
        return b

    def vm(self, name, n, chunk, **kw):
        return Multi([self.v(f"{name}", chunk, **kw) for i in range(n // chunk)])

    def add(self, kind, fmt, ops, wr=(), rd=(), **kw):
        kw.setdefault('part', self.part)
        i = Ins(kind, fmt, ops, wr, rd, **kw)
        self.ins.append(i)
        return i

    @staticmethod
    def _regs(xs):
        return [x for x in xs if isinstance(x, Reg)]

    @staticmethod
    def _sregs(xs):
        out = []
        for x in xs:
            if isinstance(x, str):
                y = x.lstrip('-')
                if y in ('vcc', 'm0', 'exec'):
                    out.append(y)
                elif y.startswith('s[') and y.endswith(']'):
                    a, b = y[2:-1].split(':')
                    out += [f"s{k}" for k in range(int(a), int(b) + 1)]
                elif y.startswith('s') and y[1:].isdigit():
                    out.append(y)
        return out

    def valu(self, op, d, *src, mods="", kind='valu', rmw=False, dpp=False, fmt=None, **kw):
        ops = [d] + list(src)
        if fmt is None:
            fmt = op + " " + ", ".join("{}" for _ in ops) + (" " + mods if mods else "")
        rd = self._regs(src) + ([d] if rmw else [])
        return self.add(kind, fmt, ops, wr=[d], rd=rd, srd=self._sregs(src), dpp=[src[0]] if dpp else [], **kw)

    def trans(self, op, d, s, **kw):
        return self.valu(op, d, s, kind='trans', **kw)

    def swap32(self, a, b, **kw):
        return self.add('swap', "v_permlane32_swap_b32 {}, {}", [a, b], wr=[a, b], rd=[a, b], dpp=[a, b], **kw)

    def swap16(self, a, b, **kw):
        return self.add('swap', "v_permlane16_swap_b32 {}, {}", [a, b], wr=[a, b], rd=[a, b], dpp=[a, b], **kw)

    def mfma(self, shape, d, a, b, c, **kw):
        op = {'big': "v_mfma_f32_32x32x16_bf16", 'med': "v_mfma_f32_16x16x32_bf16"}[shape]
        acc = isinstance(c, Reg) and c.blk is d.blk and c.off == d.off and c.n == d.n
        return self.add(shape, op + " {}, {}, {}, {}", [d, a, b, c], wr=[d], rd=self._regs([a, b, c]),
                        srcc=c if isinstance(c, Reg) else None, acc=acc, **kw)

    def smfmac(self, shape, d, a, b, idx, **kw):
        op = {'big': "v_smfmac_f32_32x32x32_bf16", 'med': "v_smfmac_f32_16x16x64_bf16"}[shape]
        return self.add(shape, op + " {}, {}, {}, {}", [d, a, b, idx], wr=[d], rd=self._regs([a, b, idx, d]),
                        srcc=d, acc=True, **kw)

    def dsr(self, d, addr, off=0, op=None, **kw):
        if op is None:
            n = d.n if isinstance(d, Reg) else 4
            op = {1: "ds_read_b32", 2: "ds_read_b64", 4: "ds_read_b128"}[n]
        assert 0 <= off < 65536
        return self.add('dsr', op + " {}, {}" + (f" offset:{off}" if off else ""), [d, addr],
                        wr=self._regs([d]), rd=[addr], **kw)

    def dsw(self, addr, s, off=0, **kw):
        op, dur = {1: ("ds_write_b32", 2), 2: ("ds_write_b64", 3), 4: ("ds_write_b128", 5)}[s.n]
        assert 0 <= off < 65536
        return self.add('dsw', op + " {}, {}" + (f" offset:{off}" if off else ""), [addr, s], rd=[addr, s], dur=dur, **kw)

    def salu(self, op, d, *src, scc_w=None, scc_r=False, **kw):
        ops = ([d] if d is not None else []) + list(src)
        fmt = op + " " + ", ".join("{}" for _ in ops)
        if scc_w is None:
            scc_w = not op.startswith(('s_mov', 's_mul', 's_cselect', 's_movk'))
        swr = self._sregs([d] if d is not None else []) + (['scc'] if scc_w else [])
        srd = self._sregs(src) + (['scc'] if scc_r or op.startswith(('s_cselect', 's_addc', 's_subb')) else [])
        return self.add('salu', fmt, ops, swr=swr, srd=srd, **kw)


def raw_latency(p, c, elems):
    if p.kind in MFMA:
        n = PASSES[p.kind] + 4
        if c.kind in MFMA and c.srcc is not None and set(elems) <= set(c.srcc.elems()):
            if c.acc and c.kind == p.kind and p.wr == c.wr:
                return 1
            return PASSES[p.kind] + 3
        return n + 1
    if p.kind in ('dsr',):
        return RES['lat']
    if p.kind == 'vld':
        return 300
    if p.kind in VALU:
        if c.kind in MFMA:
            return max(p.dur, 1) + 2
        if any(e in c.dpp for e in elems):
            return p.dur + 2
        if p.kind == 'trans' and c.kind != 'trans':
            return p.dur + 1
        return p.dur
    return 1


def relax_scc(ins):
    acc = [i for i in ins if 'scc' in i.swr or 'scc' in i.srd]
    for n, i in enumerate(acc):
        reads, writes = 'scc' in i.srd, 'scc' in i.swr
        live = writes and n + 1 < len(acc) and 'scc' in acc[n + 1].srd
        i.swr = [x for x in i.swr if x != 'scc']
        i.srd = [x for x in i.srd if x != 'scc']
        if reads or live:
            i.swr.append('sccx')
        else:
            i.srd.append('sccx')


def build_deps(ins):
    relax_scc(ins)
    lastw, readers = {}, {}
    preds = {i.id: {} for i in ins}
    byid = {i.id: i for i in ins}

    def edge(a, b, lat):
        if a is b:
            return
        d = preds[b.id]
        d[a.id] = max(d.get(a.id, 0), lat)

    for i in ins:
        rawby = {}
        for e in i.rd:
            if e in lastw:
                rawby.setdefault(lastw[e].id, []).append(e)
        for pid, el in rawby.items():
            edge(byid[pid], i, raw_latency(byid[pid], i, el))
        for e in i.srd:
            if e in lastw:
                p = lastw[e]
                lat = 1
                if e == 'm0' and i.kind == 'dma':
                    lat = 2
                if p.kind == 'dsr':
                    lat = RES['lat']
                if p.kind in VALU and i.kind in VALU:
                    lat = 3
                if p.kind in VALU and i.kind in MEM:
                    lat = 6
                edge(p, i, lat)
        for e in i.wr + i.swr:
            if e in lastw:
                p = lastw[e]
                lat = 1
                if p.kind in MFMA and i.kind not in MFMA:
                    lat = PASSES[p.kind] + 5
                if p.kind == 'dsr':
                    lat = RES['lat']
                edge(p, i, lat)
            for r in readers.get(e, []):
                lat = 1
                if r.kind in MFMA and r.srcc is not None and e in r.srcc.elems() and i.kind in VALU:
                    lat = PASSES[r.kind]
                if r.kind == 'vst':
                    lat = 3
                edge(r, i, lat)
        for a in i.after:
            if a.id in byid:
                edge(a, i, RES['lat'] if (a.kind == 'dsr' and i.kind == 'barrier') else 1)
        for e in i.rd + i.srd:
            readers.setdefault(e, []).append(i)
        for e in i.wr + i.swr:
            lastw[e] = i
            readers[e] = []
    return preds


def occupancy(i):
    if i.kind == 'dsr':
        return 'lds', (4 if 'b128' in i.fmt else 2)
    if i.kind == 'dsw':
        return 'lds', {5: 13, 3: 6, 2: 4}[i.dur]
    if i.kind in ('dma', 'vld'):
        return 'vm', RES['vm_ld']
    if i.kind == 'vst':
        return 'vm', RES['vm_st']
    return None, 0


RES = dict(vm_ld=16, vm_st=20, q_lds=4, q_vm=0, lat=34)


def schedule(ins, backbone, verbose=False, lookahead=48, pace=1.0, long_asap=False):
    byid = {i.id: i for i in ins}
    assert set(m.id for m in backbone) == set(i.id for i in ins if i.kind in MFMA), "backbone must list every MFMA"
    preds = build_deps(ins)
    succs = {i.id: [] for i in ins}
    for b, d in preds.items():
        for a, lat in d.items():
            succs[a].append((b, lat))
    ideal, t = {}, 0
    for m in backbone:
        ideal[m.id] = int(t * pace)
        t += PASSES[m.kind]
    tpipe = t
    tend = int(t * pace)
    dl = {}
    for i in reversed(ins):
        d = ideal[i.id] if i.kind in MFMA else tend + 40
        if i.deadline is not None:
            d = min(d, ideal[i.deadline.id] if isinstance(i.deadline, Ins) else i.deadline)
        if i.kind not in MFMA:
            for b, lat in succs[i.id]:
                d = min(d, dl[b] - max(lat, i.dur))
        dl[i.id] = d
    pos = {m.id: k for k, m in enumerate(backbone)}
    need = {}
    for i in ins:
        mx = -1
        for a in preds[i.id]:
            mx = max(mx, need[a], pos.get(a, -1))
        need[i.id] = mx
        if i.kind in MFMA:
            assert mx < pos[i.id], ("backbone order violates dependence", i, backbone[mx])
    states = {}
    for i in ins:
        for a in preds[i.id]:
            p = byid[a]
            if p.kind in VALU:
                pw = set(p.wr)
                n = 0
                if i.kind in MFMA and pw & set(i.rd):
                    n = 2
                if i.kind in VALU and pw & set(i.dpp):
                    n = 2
                if p.kind == 'trans' and i.kind in VALU and i.kind != 'trans' and pw & set(i.rd):
                    n = max(n, 1)
                if n:
                    states.setdefault(i.id, []).append((a, n))
    index = {}

    def count_ok(i, slack=0):
        return all(len(out) - index[a] - 1 + slack >= n for a, n in states.get(i.id, ()))
    npred = {i.id: len(preds[i.id]) for i in ins}
    est = {i.id: 0 for i in ins}
    ready = set(i.id for i in ins if npred[i.id] == 0 and i.kind not in MFMA)
    out = []
    t = 0
    pipe = 0
    k = 0
    free_scalar = False
    last_valu_end = -10
    late = 0
    stalls = []
    done = set()
    resfree = {'lds': -100, 'vm': -100}
    idle = [0]

    def commit(i, when):
        i.t = when
        r, o = occupancy(i)
        if r:
            resfree[r] = max(resfree[r], when) + o
        if i.kind == 'vst':
            for o in out[-8:]:
                if o.kind in MFMA:
                    for b, lat in succs[o.id]:
                        if lat > 1 and o.t + lat > when:
                            est[b] = max(est[b], o.t + lat + i.dur - 1)
        index[i.id] = len(out)
        out.append(i)
        done.add(i.id)
        idle[0] = 0
        ready.discard(i.id)
        for b, lat in succs[i.id]:
            est[b] = max(est[b], when + lat)
            npred[b] -= 1
            if npred[b] == 0 and byid[b].kind not in MFMA:
                ready.add(b)

    def released(i):
        if i.release is not None and i.release.id in byid and i.release.id not in done:
            return False
        return True

    while len(out) < len(ins):
        m = backbone[k] if k < len(backbone) else None
        m_ok = m is not None and npred[m.id] == 0
        m_time = max(t, pipe, est[m.id]) if m_ok else None
        if free_scalar:
            free_scalar = False
            c = [byid[x] for x in ready if byid[x].kind in SCALAR and est[x] <= t - 1 and released(byid[x])
                 and byid[x].kind != 'barrier']
            if c:
                c.sort(key=lambda i: (dl[i.id], i.id))
                commit(c[0], t - 1)
                continue
        go = m_ok and m_time <= t and count_ok(m, idle[0])
        if go and pace > 1.0 and t < ideal[m.id]:
            for x in ready:
                i = byid[x]
                if est[x] <= t and released(i) and i.kind in VALU:
                    go = False
                    m_time = t + 2
                    break
        if go:
            late = max(0, t - ideal[m.id])
            if pipe < t and k > 0:
                stalls.append((k, t - pipe))
            commit(m, t)
            pipe = t + PASSES[m.kind]
            t += 2
            k += 1
            free_scalar = True
            continue
        cand = []
        for x in ready:
            i = byid[x]
            if est[x] > t or not released(i) or not count_ok(i, idle[0]):
                continue
            pen = max(0, last_valu_end + 2 - t) if i.kind in MEM else 0
            d = dl[x] + late
            r, o = occupancy(i)
            if r and resfree[r] > t + pen + RES['q_' + r]:
                continue
            if i.kind in ('dsr', 'vld') and i.release is None and d - t > lookahead:
                continue
            cand.append((i, pen, d))
        horizon = max(m_time, t + 1) if m_ok else None
        after_m = bool(out) and any(o.kind in MFMA and o.t == t - 2 for o in out[-2:])
        best = None
        if cand:
            def key(c):
                i, pen, d = c
                fits = horizon is None or t + pen + i.dur <= horizon or (long_asap and i.dur > 2 and after_m)
                urgent = d <= t + 2
                mempref = 0 if (i.kind in MEM and pen == 0) else 1
                return (0 if (fits or urgent) else 1, 0 if pen == 0 or urgent else 1, mempref if (d - t < 200 or long_asap) else 1, d, i.id)
            cand.sort(key=key)
            i, pen, d = cand[0]
            fits = horizon is None or t + pen + i.dur <= horizon or (long_asap and i.dur > 2 and after_m)
            if fits or d <= t + 2:
                if not (pen > 0 and d > t + 6 and horizon is not None):
                    best = (i, pen)
        if best is None:
            t += 1
            idle[0] += 1
            if t > 100000:
                raise RuntimeError("scheduler stuck: " + repr([byid[x] for x in ready][:5]) + repr(m))
            continue
        i, pen = best
        commit(i, t + pen)
        t += pen + i.dur
        if i.kind in VALU:
            last_valu_end = t
    total = max(t, pipe)
    if verbose:
        print(f"schedule: {len(ins)} instr, ideal pipe {tpipe} slots, scheduled {total} slots ({total * 4} cycles)")
        busy = [0] * (total + 10)
        for i in out:
            if i.kind not in SCALAR:
                for x in range(i.t, i.t + i.dur):
                    busy[x] = 1
        idl = {}
        for x in range(total):
            if not busy[x]:
                idl[x // 100 * 100] = idl.get(x // 100 * 100, 0) + 1
        print(f"  vector issue busy {sum(busy)} slots; idle by time:", idl)
    return out, total


def live_ranges(order, blks):
    n = len(order)
    times = [i.t for i in order]

    def idx_after(k, dt):
        j = k
        while j + 1 < n and times[j + 1] < times[k] + dt:
            j += 1
        return j
    ev = {}
    for k, i in enumerate(order):
        for e in i.rd:
            end = k
            if i.kind == 'vst':
                end = min(n - 1, k + 2)
            if i.kind in MFMA and i.srcc is not None and e in i.srcc.elems():
                end = idx_after(k, PASSES[i.kind] + 1)
            ev.setdefault(e, []).append(('r', k, end))
        for e in i.wr:
            end = k
            if i.kind in MFMA:
                end = idx_after(k, PASSES[i.kind] + 6)
            ev.setdefault(e, []).append(('w', k, end))
    rng = {}
    for b in blks:
        for x in range(b.size):
            e = (b, x)
            if b.persistent:
                rng[e] = [(-1, n + 1)]
                continue
            L = ev.get(e, [])
            iv = []
            cur = None
            for typ, k, end in L:
                if typ == 'r':
                    if cur is None:
                        assert b.carried, ("read before write", b, x, order[k])
                        cur = [-1, end]
                    cur[1] = max(cur[1], end)
                else:
                    if cur is not None and cur[1] < k:
                        iv.append(tuple(cur))
                        cur = None
                    if cur is None:
                        cur = [k, end]
                    cur[1] = max(cur[1], end)
            if cur is not None:
                if (b.carried and L and L[0][0] == 'r' and any(x[0] == 'w' for x in L)) or b.liveout:
                    cur[1] = n + 1
                iv.append(tuple(cur))
            rng[e] = iv
    return rng


def split_pool(order, blks):
    cur = {}
    for i in order:
        def ren(e):
            return (cur.get(e[0], e[0]), e[1])
        if i.kind in MFMA and not i.acc and i.wr[0][0].name.startswith('acc'):
            old = i.wr[0][0]
            nb = Blk(old.name, old.size)
            blks.append(nb)
            cur[old] = nb
        rr = lambda r: Reg(cur.get(r.blk, r.blk), r.off, r.n)
        c_is = [n for n, o in enumerate(i.ops) if o is i.srcc]
        i.ops = [rr(o) if isinstance(o, Reg) else o for o in i.ops]
        if i.srcc is not None:
            i.srcc = i.ops[c_is[-1]] if c_is else rr(i.srcc)
        i.rd = [ren(e) for e in i.rd]
        i.wr = [ren(e) for e in i.wr]
        i.dpp = [ren(e) for e in i.dpp]
    for old in cur:
        blks.remove(old)


def allocate(order, blks, nregs=256, tries=600, seed=0, verbose=False):
    split_pool(order, blks)
    rng = live_ranges(order, blks)
    n = len(order)
    press = [0] * (n + 3)
    for e, iv in rng.items():
        for a, b in iv:
            for k in range(max(a, 0), min(b, n - 1) + 1):
                press[k] += 1
    if verbose:
        mx = max(press)
        at = press.index(mx)
        print(f"  max live registers {mx} at index {at} of {n} (t={order[at].t})")
        if verbose > 1:
            d = {}
            for e, iv in rng.items():
                if any(a <= at <= b for a, b in iv):
                    d[e[0].name] = d.get(e[0].name, 0) + 1
            print("   ", d)
            print("    pressure profile:", [(order[x].t, press[x]) for x in range(0, n, max(1, n // 40))])
    rnd = random.Random(seed)
    free = [b for b in blks if b.base is None]
    fixed = [b for b in blks if b.base is not None]

    def mask(iv):
        m = 0
        for a, b in iv:
            lo, hi = 2 * (a + 1) + 1, 2 * (b + 1) + 1
            if a == b:
                hi = lo + 1
            m |= ((1 << (hi - lo)) - 1) << lo
        return m
    masks = {e: mask(iv) for e, iv in rng.items()}
    for k, i in enumerate(order):
        if i.kind in MFMA or i.kind in ('dsr', 'vld'):
            bit = 1 << (2 * (k + 1))
            for e in i.wr + i.rd:
                masks[e] |= bit
    weight = {b: sum(bin(masks[(b, x)]).count('1') for x in range(b.size)) for b in free}
    start = {b: min([iv[0][0] for iv in (rng[(b, x)] for x in range(b.size)) if iv] or [0]) for b in free}
    best = None
    for tr in range(tries):
        if tr == 0:
            seq = sorted(free, key=lambda b: (-b.size, -weight[b]))
        elif tr == 1:
            seq = sorted(free, key=lambda b: -weight[b])
        elif tr % 3 == 2:
            jit = rnd.random() * 40
            seq = sorted(free, key=lambda b: (0 if b.size > 8 else 1, start[b] + jit * rnd.random()))
        elif tr % 3 == 0:
            seq = sorted(free, key=lambda b: (-b.size, -weight[b] * (0.5 + rnd.random())))
        else:
            seq = sorted(free, key=lambda b: -(weight[b] * (0.3 + rnd.random()) + b.size * n * 0.5 * rnd.random()))
        occ = [0] * nregs
        for b in fixed:
            for x in range(b.size):
                occ[b.base + x] |= masks[(b, x)]
        ok = True
        place = {}
        for b in seq:
            found = None
            for base in range(0, nregs - b.size + 1, b.align):
                if all((occ[base + x] & masks[(b, x)]) == 0 for x in range(b.size)):
                    found = base
                    break
            if found is None:
                ok = False
                break
            place[b] = found
            for x in range(b.size):
                occ[found + x] |= masks[(b, x)]
        if ok:
            best = place
            break
    if best is None:
        return False
    for b, base in best.items():
        b.base = base
    if verbose:
        print(f"  allocated after {tr + 1} tries, highest register v{max(b.base + b.size for b in blks) - 1}")
    return True


def phys(e):
    return e[0].base + e[1]


class Raw(Ins):
    def __init__(self, kind, text, n=1):
        super().__init__(kind, text.replace("{", "{{").replace("}", "}}"), [], [], [])
        self.n = n


def required_states(p, c):
    pw = set(phys(e) for e in p.wr)
    cr = set(phys(e) for e in c.rd)
    cw = set(phys(e) for e in c.wr)
    need = 0
    if p.kind in MFMA:
        n = PASSES[p.kind]
        if c.kind in MFMA:
            cc = set(phys(e) for e in c.srcc.elems()) if c.srcc is not None else set()
            if pw & cc:
                same = c.kind == p.kind and cc == pw
                if not same:
                    need = max(need, n + 2)
            ab = set()
            for o in c.ops[1:4]:
                if isinstance(o, Reg) and o is not c.srcc:
                    ab |= set(phys(e) for e in o.elems())
            if pw & ab:
                need = max(need, n + 4)
        elif c.kind in VALU or c.kind in MEM:
            if pw & (cr | cw):
                need = max(need, n + 4)
            if p.srcc is not None and c.kind in VALU and set(phys(e) for e in p.srcc.elems()) & cw:
                need = max(need, n - 1)
    elif p.kind in VALU:
        if c.kind in MFMA and pw & cr:
            need = max(need, 2)
        if c.kind in VALU and pw & set(phys(e) for e in c.dpp):
            need = max(need, 2)
        if p.kind == 'trans' and c.kind in VALU and c.kind != 'trans' and pw & cr:
            need = max(need, 1)
        sw = set(p.swr)
        if sw & set(c.srd):
            if c.kind in VALU:
                need = max(need, 2)
            if c.kind in MEM:
                need = max(need, 5)
        if 'readlane' in c.fmt or 'readfirstlane' in c.fmt:
            if pw & cr:
                need = max(need, 1)
    elif p.kind == 'vst':
        pr = set(phys(e) for e in p.rd)
        if pr & cw:
            need = max(need, 2 if c.kind in VALU else 1)
    elif p.kind == 'salu':
        if 'm0' in p.swr and c.kind == 'dma':
            need = max(need, 1)
    return need


def path_time(chain, timed):
    t = 0
    vfree = 0
    lastm = None
    prev = None
    for q in chain:
        if q.kind == 'label':
            continue
        if prev is not None:
            t += getattr(prev, 'n', 1) if prev.kind == 'nop' else 1
        if q.kind not in SCALAR:
            if timed:
                t = max(t, vfree)
            if q.kind in MFMA and lastm is not None:
                t = max(t, lastm)
            vfree = t + (2 if q.kind in MFMA or q.kind in ('trans', 'swap') else q.dur if q.kind == 'dsw' else 1)
            if q.kind in MFMA:
                lastm = t + PASSES[q.kind]
        prev = q
    return t


def fix_hazards(seq, wrap=None):
    pre = list(wrap[-40:]) if wrap else []
    out = list(pre)
    added = 0
    for c in seq:
        lo = max(0, len(out) - 24)
        reqs = []
        for a in range(len(out) - 1, lo - 1, -1):
            need = required_states(out[a], c)
            if need:
                reqs.append((a, need))
        n = 0
        while True:
            pad = [Raw('nop', f"s_nop {n - 1}", n=n)] if n else []
            if all(path_time(out[a:] + pad + [c], out[a].kind in MFMA) - 1 >= need for a, need in reqs):
                break
            n += 1
        assert n <= 16
        if n:
            out.append(Raw('nop', f"s_nop {n - 1}", n=n))
            added += n
        out.append(c)
    return out[len(pre):], added


def insert_waits(seq, carried_lgkm=(), hoist=True):
    out = []
    lg = list(carried_lgkm)
    vm = []
    for c in seq:
        touched = set(phys(e) for e in c.rd) | set(phys(e) for e in c.wr)
        for q, name in ((lg, 'lgkmcnt'), (vm, 'vmcnt')):
            need = -1
            for k, p in enumerate(q):
                if p.kind in ('dsr', 'vld') and touched & set(phys(e) for e in p.wr):
                    need = k
                if p in getattr(c, 'wait_for', ()):
                    need = k
            if need >= 0:
                n = len(q) - need - 1
                assert n <= (15 if name == 'lgkmcnt' else 63), "counter overflow"
                w = Raw('wait', f"s_waitcnt {name}({n})")
                w.t = c.t
                at = len(out)
                if hoist and name == 'lgkmcnt' and q[need].t is not None:
                    j = len(out) - 1
                    while j >= 0 and out[j].kind not in ('dsr', 'dsw', 'smem', 'wait', 'barrier', 'label', 'branch'):
                        if out[j].kind in MFMA and out[j].t is not None and out[j].t >= q[need].t + RES['lat'] - 4:
                            if j + 1 >= len(out) or out[j + 1].kind not in SCALAR:
                                at = j + 1
                                break
                        if out[j].t is not None and out[j].t < q[need].t + RES['lat'] - 4:
                            break
                        j -= 1
                out.insert(at, w)
                del q[:need + 1]
        if c.kind == 'wait':
            txt = c.text()
            for q, name in ((lg, 'lgkmcnt'), (vm, 'vmcnt')):
                if name + "(" in txt:
                    n = int(txt.split(name + "(")[1].split(")")[0])
                    if len(q) > n:
                        del q[:len(q) - n]
        if c.kind in ('dsr', 'dsw'):
            lg.append(c)
            if len(lg) > 15:
                w = Raw('wait', "s_waitcnt lgkmcnt(14)")
                w.t = c.t
                out.append(w)
                del lg[:len(lg) - 15]
        if c.kind in ('vld', 'vst', 'dma'):
            vm.append(c)
        out.append(c)
    return out, lg


def estimate(seq):
    t = pipe = 0
    free = False
    lastv = -10
    for c in seq:
        if c.kind == 'label':
            continue
        if c.kind in MFMA:
            t = max(t, pipe)
            pipe = t + PASSES[c.kind]
            t += 2
            free = True
            continue
        if c.kind in SCALAR:
            n = getattr(c, 'n', 1) if c.kind == 'nop' else 1
            t += n - (1 if free else 0)
            free = False
            continue
        free = False
        if c.kind in MEM:
            t = max(t, lastv + 2)
        t += c.dur
        if c.kind in VALU:
            lastv = t
    return max(t, pipe)
```

```python
import sys, struct, math, os
sys.path.insert(0, os.path.dirname(os.path.abspath(__file__)))
from ir import *

NAME = "standalone__video_video_swin__vision"
NBYTES = 109734912
TS, RS = 27433728, 72576
NWIN = 2916
NWG = int(os.environ.get('NWG', 243))
PLANE = 9216
BUFSZ = 37632
RTAB = 36864
NBUF = 3
TAB = NBUF * BUFSZ
ENT = 2320
T_G, T_V, T_R = 768, 1536, 2304
F_BS = TAB + 12 * ENT
F_AS, F_AT, F_BT = 2 * BUFSZ, 2 * BUFSZ + 18432, TAB
L_CLAIM = F_BS + 18432
LDS_BYTES = L_CLAIM + 16
OOB = 0x40000000
C96 = 96 * 1e-5


def f32(x):
    return "0x%08x" % struct.unpack("<I", struct.pack("<f", x))[0]


OPT = dict(ld_nt=1, st=1, lookahead=48, dump=0, stamp=0, pf=1, d0=40, dd=55, exp=0, pool=4, order=4, pace=100, vmst=20, wv=0, lat=34, qlds=4, align=1, nl0=3, fpace=100, xearly=0, claim=1)

SX, SO, SW, SW2 = "s[4:7]", "s[8:11]", "s[12:15]", "s[16:19]"
sWAVE, sNWIN, sCNT, sWID = "s20", "s21", "s22", "s23"
sB2, sB1, sB0, sBM = "s24", "s25", "s26", "s27"
sO0, sO1, sO2 = "s28", "s29", "s30"
sDT, sDS, sPL = "s31", "s42", "s43"
SEL = [None, "s[32:33]", "s[34:35]", "s[36:37]"]
MRG = [None, "s[38:39]", "s[40:41]", "s[44:45]"]
sT0, sT1, sT2, sT3 = "s46", "s47", "s48", "s49"
sM0 = "s50"
sEPS = "s51"
sEXT, sIT = "s53", "s55"
sDT2, sDS2, sENT2 = "s[56:57]", "s[58:59]", "s[60:61]"
sKA, sKB = "s52", "s54"


def aBT(m, s): k = 4 * (3 * m + s); return f"a[{k}:{k + 3}]"
def aAT(m, s): k = 72 + 4 * (3 * m + s); return f"a[{k}:{k + 3}]"
def aAS(m, s): k = 144 + 4 * (3 * m + s); return f"a[{k}:{k + 3}]"
def aBS(m, s): k = 216 + 4 * (3 * m + s); assert k < 256; return f"a[{k}:{k + 3}]"


def wBS(p, k, m):
    W = []
    for s in range(3):
        if 3 * m + s < 10:
            W.append(aBS(m, s))
        elif 3 * m + s < 10 + OPT['wv']:
            q = 4 * (3 * m + s - 10)
            W.append(k.WV[q:q + 4])
        else:
            w = p.v(f"WS{m}_{s}", 4)
            p.dsr(w.all, k.aW[0], off=medoff(m, s))
            W.append(w.all)
    return W
def medoff(m, s): return (m >> 1) * 6144 + s * 2048 + (m & 1) * 1024


class K:
    def __init__(self):
        mk = lambda n, s=1: Blk(n, s, persistent=True)
        self.IZ = mk('IZ', 6)
        self.ones = mk('ones', 4)
        self.goff = mk('goff', 9)
        self.mk48 = mk('mk48', 2)
        self.AT, self.AS, self.AE = mk('AT', 4), mk('AS', 5), mk('AE', 3)
        self.aT, self.aRw = self.AT[0:3], self.AT[3:4]
        self.aY, self.aRrow, self.aRcol, self.aStg, self.aRq = [self.AS[i:i + 1] for i in range(5)]
        self.aY48, self.aV48, self.aR48 = [self.AE[i:i + 1] for i in range(3)]
        names = ('aW', 'diag', 'gst3', 'clm')
        for n in names:
            setattr(self, n, mk(n))
        self.WV = mk('WV', 4 * OPT['wv']) if OPT['wv'] else None
        self.all = [self.IZ, self.ones, self.mk48, self.AT] + ([self.WV] if self.WV else []) + [self.aW, self.AS, self.diag, self.AE, self.gst3, self.goff, self.clm]
        top = 256
        for b in self.all:
            top -= b.size
            b.base = top
        assert all(b.base % 2 == 0 for b in (self.IZ, self.ones, self.AT, self.AS, self.AE))
        self.low = top
        if OPT['stamp']:
            z = mk('v0')
            z.base = 0
            self.all.append(z)


class Pool:
    def __init__(self, p, n):
        self.b = [p.v(f"acc{i}", 4) for i in range(n)]
        self.i = 0

    def get(self):
        self.i += 1
        return self.b[self.i % len(self.b)]


def merge(p, k, vals, name):
    nt = len(vals)
    out = []
    res = [p.v(f"{name}{i}")[0] for i in range(len(vals[0]))]
    cur = list(vals[0])
    for j in range(1, nt):
        p.salu("s_mov_b64", "vcc", MRG[j])
        for i in range(len(cur)):
            p.valu("v_cndmask_b32_dpp", res[i], vals[j][i], cur[i], "vcc", dpp=True,
                   mods=f"row_ror:{4 * j} row_mask:0xf bank_mask:0xf")
            cur[i] = res[i]
    return cur


def ln_finish(p, k, Q, SUM, name):
    nt = len(Q)
    sel = []
    for j in range(nt):
        d = p.v(f"{name}d{j}")[0]
        p.valu("v_cndmask_b32_e64", d, Q[j][0], Q[j][1], SEL[1])
        p.valu("v_cndmask_b32_e64", d, d, Q[j][2], SEL[2])
        p.valu("v_cndmask_b32_e64", d, d, Q[j][3], SEL[3])
        sel.append([d, SUM[j][0]])
    q, s = merge(p, k, sel, name + "m")
    t = p.v(name + "t")[0]
    p.valu("v_mul_f32", t, s, s)
    p.valu("v_fmamk_f32", t, t, f32(-1.0 / 96), q)
    p.valu("v_add_f32_e64", t, t, sEPS, fmt="v_add_f32_e64 {}, |{}|, {}")
    r = p.v(name + "r")[0]
    p.trans("v_rsq_f32", r, t)
    return r


class TPhase:
    def __init__(self, p, k, nt, pool, aTx):
        self.p, self.k, self.nt, self.pool, self.aTx = p, k, nt, pool, aTx
        self.X = [p.v(f"X{j}", 20) for j in range(nt)]
        self.Q = [p.v(f"Q{j}", 4) for j in range(nt)]
        self.SUM = [p.v(f"SUM{j}", 4) for j in range(nt)]
        self.GP = [p.vm(f"GP{j}", 12, 4) for j in range(nt)]
        self.ST = [p.v(f"ST{j}", 4) for j in range(nt)]
        self.VI = [p.vm(f"VI{j}", 18, 6) for j in range(nt)]
        self.YP = [p.vm(f"YP{j}", 12, 4) for j in range(nt)]
        self.Q2 = [p.v(f"Q2{j}", 4) for j in range(nt)]
        self.SUM2 = [p.v(f"SUM2{j}", 4) for j in range(nt)]
        self.ywr = []

    def xs(self, j, s):
        return self.X[j][2 + 6 * s: 6 + 6 * s]

    def load(self, js, **kw):
        return [self.p.dsr(self.xs(j, s), self.k.aT[j], off=64 * s, **kw) for j in js for s in range(3)]

    def q1(self, j):
        p, Q, SUM = self.p, self.Q, self.SUM
        for s in range(3):
            p.mfma('med', Q[j].all, self.xs(j, s), self.xs(j, s), Q[j].all if s else 0)
        for s in range(3):
            p.mfma('med', SUM[j].all, self.k.ones.all, self.xs(j, s), SUM[j].all if s else 0)

    def ln1(self):
        self.r1 = ln_finish(self.p, self.k, self.Q, self.SUM, "l1")

    def G(self, j, ms=range(6)):
        p = self.p
        for m in ms:
            acc = self.pool.get()
            for s in range(3):
                p.mfma('med', acc.all, aAT(m, s), self.xs(j, s), acc.all if s else 0)
            p.valu("v_cvt_pk_bf16_f32", self.GP[j][2 * m], acc[0], acc[1])
            p.valu("v_cvt_pk_bf16_f32", self.GP[j][2 * m + 1], acc[2], acc[3])

    def S(self, j):
        for s in range(3):
            self.p.mfma('med', self.ST[j].all, self.xs(j, s), self.GP[j][4 * s:4 * s + 4], self.ST[j].all if s else 0)

    def softmax(self):
        p, k, nt, ST, r1 = self.p, self.k, self.nt, self.ST, self.r1
        S = merge(p, k, [[ST[j][r] for r in range(4)] for j in range(nt)], "Sm")
        T4 = p.vm("T4", 4, 1)
        qp = lambda r: f"quad_perm:[{r},{r},{r},{r}] row_mask:0xf bank_mask:0xf"
        for r in range(4):
            p.valu("v_mul_f32_dpp", T4[r], r1, S[r], dpp=True, mods=qp(r))
        mx = p.v("tmx")[0]
        p.valu("v_max3_f32", mx, T4[0], T4[1], T4[2])
        p.valu("v_max_f32", mx, mx, T4[3])
        p.valu("v_mul_f32_e64", mx, mx, r1, fmt="v_mul_f32_e64 {}, -{}, {}")
        for r in range(4):
            p.valu("v_fma_f32", T4[r], T4[r], r1, mx)
        for r in range(4):
            p.trans("v_exp_f32", T4[r], T4[r])
        l0, l1 = p.v("tl0")[0], p.v("tl1")[0]
        p.valu("v_add_f32", l0, T4[0], T4[1])
        p.valu("v_add_f32", l1, T4[2], T4[3])
        p.valu("v_add_f32", l0, l0, l1)
        p.trans("v_rcp_f32", l0, l0)
        for r in range(4):
            p.valu("v_mul_f32_dpp", T4[r], r1, T4[r], dpp=True, mods=qp(r))
        for r in range(4):
            p.valu("v_mul_f32", T4[r], T4[r], l0)
        self.PM = p.vm("PM", 2, 1)
        p.valu("v_cvt_pk_bf16_f32", self.PM[0], T4[0], T4[1])
        p.valu("v_cvt_pk_bf16_f32", self.PM[1], T4[2], T4[3])

    def V(self, j, ms=range(6)):
        p, k, VI = self.p, self.k, self.VI
        for m in ms:
            acc = self.pool.get()
            first = None
            for s in range(3):
                i = p.mfma('med', acc.all, self.xs(j, s), aBT(m, s), acc.all if s else 0)
                first = first or i
            o = 6 * (m >> 1) + 4 * (m & 1)
            p.valu("v_cvt_pk_bf16_f32", VI[j][o], acc[0], acc[1])
            p.valu("v_cvt_pk_bf16_f32", VI[j][o + 1], acc[2], acc[3])
            if m & 1 == 0:
                p.valu("v_mov_b64", VI[j][3 * m + 2:3 * m + 4], k.IZ[2:4], release=first)

    def PV(self, j):
        p, k, X, VI, YP = self.p, self.k, self.X, self.VI, self.YP
        rel = [i for i in p.ins if i.kind == 'med'][-12]
        for e in range(2):
            if j == 0:
                p.valu("v_and_b32", X[j][e], self.PM[e], k.diag[0], release=rel)
            else:
                p.valu("v_and_b32_dpp", X[j][e], self.PM[e], k.diag[0], dpp=True, release=rel,
                       mods=f"row_ror:{16 - 4 * j} row_mask:0xf bank_mask:0xf")
        for c in range(1, 4):
            p.valu("v_mov_b64", X[j][6 * c:6 * c + 2], X[j][0:2])
        for m in range(6):
            s, e = m >> 1, m & 1
            acc = self.pool.get()
            p.mfma('med', acc.all, VI[j][6 * s + 2 * e: 6 * s + 2 * e + 4], X[j][6 * s + 4 * e: 6 * s + 4 * e + 4], 0)
            p.valu("v_cvt_pk_bf16_f32", YP[j][2 * m], acc[0], acc[1])
            p.valu("v_cvt_pk_bf16_f32", YP[j][2 * m + 1], acc[2], acc[3])
        for s in range(3):
            self.ywr.append(p.dsw(self.aTx(j), YP[j][4 * s:4 * s + 4], off=64 * s))

    def q2(self, j):
        p, YP, Q2, SUM2 = self.p, self.YP, self.Q2, self.SUM2
        for s in range(3):
            p.mfma('med', Q2[j].all, YP[j][4 * s:4 * s + 4], YP[j][4 * s:4 * s + 4], Q2[j].all if s else 0)
        for s in range(3):
            p.mfma('med', SUM2[j].all, self.k.ones.all, YP[j][4 * s:4 * s + 4], SUM2[j].all if s else 0)

    def ln2(self):
        r2 = ln_finish(self.p, self.k, self.Q2, self.SUM2, "l2")
        self.ywr.append(self.p.dsw(self.k.aRw[0], r2))


class SPhase:
    def __init__(self, p, k, pool, car):
        self.p, self.k, self.pool = p, k, pool
        if not car:
            mb = lambda n, c, sz: Multi([Blk(n, sz, carried=True) for _ in range(c)])
            car['Y3'] = mb("Y3", 3, 4)
            car['RK48'] = mb("RK48", 1, 1)
            car['RKq'] = mb("RKq", 1, 4)
            car['S3'] = mb("S3", 4, 4)
            for m in range(6):
                car[f'VP{m}'] = mb(f"VP{m}", 2, 4)
        for v in car.values():
            p.blks += v.blks
        self.car = car
        self.Y = [p.vm(f"Y{u}", 12, 4) for u in range(4)]
        self.GP = [p.vm(f"SG{u}", 12, 4) for u in range(4)]
        self.RK = p.vm("RK", 12, 4)
        self.RK48 = p.v("RK48n")[0]
        self.RQ = p.vm("RQ", 3, 1)
        self.VP = [car[f'VP{m}'] for m in range(6)]
        self.P = [p.vm(f"P{u}", 8, 4) for u in range(3)] + [None]
        self.st = []
        self.ow = [[], [], [], []]

    def loadY(self, u, **kw):
        p, k = self.p, self.k
        if u < 3:
            return [p.dsr(self.Y[u][4 * s:4 * s + 4], k.aY[0], off=3072 * u + 64 * s, **kw) for s in range(3)]
        return [p.dsr(self.Y[3][4 * s:4 * s + 4], k.aY48[0], off=64 * s, **kw) for s in range(3)]

    def loadG48(self, **kw):
        L = [self.p.dsr(self.GP[3][4 * s:4 * s + 4], self.k.aY48[0], off=T_G + 64 * s, **kw) for s in range(3)]
        return L

    def loadCarry(self, **kw):
        p, k, car = self.p, self.k, self.car
        L = [p.dsr(car['RKq'][0:4], k.aRq[0], **kw), p.dsr(car['RK48'][0], k.aR48[0], **kw)]
        L += [p.dsr(car['Y3'][4 * s:4 * s + 4], k.aY48[0], off=64 * s, **kw) for s in range(3)]
        return L

    def loadR(self, **kw):
        p, k = self.p, self.k
        L = [p.dsr(self.RK[4 * a:4 * a + 4], k.aRrow[0], off=64 * a, **kw) for a in range(3)]
        L.append(p.dsr(self.RK48, k.aR48[0], **kw))
        return L

    def loadRQ(self, u, **kw):
        return self.p.dsr(self.RQ[u], self.k.aRcol[0], off=64 * u, **kw)

    def loadV48(self, **kw):
        return [self.p.dsr(self.VP[m][6:8], self.k.aV48[0], off=32 * m, **kw) for m in range(6)]

    def G(self, u, ms=range(6)):
        p = self.p
        for m in ms:
            acc = self.pool.get()
            for s in range(3):
                p.mfma('med', acc.all, aAS(m, s), self.Y[u][4 * s:4 * s + 4], acc.all if s else 0)
            p.valu("v_cvt_pk_bf16_f32", self.GP[u][2 * m], acc[0], acc[1])
            p.valu("v_cvt_pk_bf16_f32", self.GP[u][2 * m + 1], acc[2], acc[3])

    def V(self, m, kts=range(3)):
        p = self.p
        W = wBS(p, self.k, m)
        for kt in kts:
            acc = self.pool.get()
            for s in range(3):
                p.mfma('med', acc.all, self.Y[kt][4 * s:4 * s + 4], W[s], acc.all if s else 0)
            p.valu("v_cvt_pk_bf16_f32", self.VP[m][2 * kt], acc[0], acc[1])
            p.valu("v_cvt_pk_bf16_f32", self.VP[m][2 * kt + 1], acc[2], acc[3])

    def allred(self, op, x, t):
        p = self.p
        for sw in (p.swap32, p.swap16):
            p.valu("v_mov_b32", t, x)
            sw(x, t)
            p.valu(op, x, x, t)

    def S(self, u):
        p, k = self.p, self.k
        S = [p.v(f"S{u}{kt}", 4) for kt in range(4)] if u < 3 else self.car['S3'].blks
        for kt in range(4):
            for s in range(3):
                p.mfma('med', S[kt].all, self.Y[kt][4 * s:4 * s + 4], self.GP[u][4 * s:4 * s + 4], S[kt].all if s else 0)
        if u == 3:
            return
        el = [S[kt][r] for kt in range(3) for r in range(4)] + [S[3][0]]
        rk = [self.RK[i] for i in range(12)] + [self.RK48]
        rq = self.RQ[u] if u < 3 else self.RK48
        P = self.P[u]
        for i in range(13):
            p.valu("v_mul_f32", el[i], el[i], rk[i])
        m0, m1 = p.v(f"mxa{u}")[0], p.v(f"mxb{u}")[0]
        p.valu("v_max3_f32", m0, el[0], el[1], el[2])
        p.valu("v_max3_f32", m1, el[3], el[4], el[5])
        p.valu("v_max3_f32", m0, m0, el[6], el[7])
        p.valu("v_max3_f32", m1, m1, el[8], el[9])
        p.valu("v_max3_f32", m0, m0, el[10], el[11])
        p.valu("v_max3_f32", m0, m0, m1, el[12])
        self.allred("v_max_f32", m0, m1)
        p.valu("v_mul_f32_e64", m0, m0, rq, fmt="v_mul_f32_e64 {}, -{}, {}")
        for i in range(13):
            p.valu("v_fma_f32", el[i], el[i], rq, m0)
            p.trans("v_exp_f32", el[i], el[i])
        l0, l1 = p.v(f"la{u}")[0], p.v(f"lb{u}")[0]
        p.valu("v_add_f32", l0, el[0], el[1])
        p.valu("v_add_f32", l1, el[2], el[3])
        for i in range(4, 12):
            d = l0 if i % 2 == 0 else l1
            p.valu("v_add_f32", d, d, el[i])
        p.valu("v_add_f32", l0, l0, l1)
        self.allred("v_add_f32", l0, l1)
        p.valu("v_add_f32", l0, l0, el[12])
        p.trans("v_rcp_f32", l0, l0)
        for i in range(13):
            p.valu("v_mul_f32", el[i], el[i], rk[i])
        for i in range(13):
            p.valu("v_mul_f32", el[i], el[i], l0)
            if i % 2 == 1:
                p.valu("v_cvt_pk_bf16_f32", P[i >> 1], el[i - 1], el[i])
        p.valu("v_cvt_pk_bf16_f32", el[12], el[12], el[12])
        p.valu("v_and_b32", P[6], el[12], k.mk48[0])
        p.valu("v_and_b32", P[7], el[12], k.mk48[1])

    def softmax48(self):
        p, k = self.p, self.k
        S = self.car['S3'].blks
        RKq, r48 = self.car['RKq'], self.car['RK48'][0]
        full = "row_mask:0xf bank_mask:0xf"
        for b in (1, 2):
            for r in range(4):
                p.valu("v_mov_b32_dpp", S[0][r], S[b][r], dpp=True, rmw=True, mods=f"quad_perm:[0,1,2,3] row_mask:0xf bank_mask:{1 << b:#x}")
        el = [S[0][r] for r in range(4)] + [S[3][0]]
        rk = [RKq[r] for r in range(4)] + [r48]
        for i in range(5):
            p.valu("v_mul_f32", el[i], el[i], rk[i])
        m0, m1 = p.v("mxa3")[0], p.v("mxb3")[0]
        p.valu("v_max3_f32", m0, el[0], el[1], el[2])
        p.valu("v_max3_f32", m0, m0, el[3], el[4])
        for rot in (4, 8):
            p.valu("v_max_f32_dpp", m0, m0, m0, dpp=True, mods=f"row_ror:{rot} {full}")
        self.allred("v_max_f32", m0, m1)
        p.valu("v_mul_f32_e64", m0, m0, r48, fmt="v_mul_f32_e64 {}, -{}, {}")
        for i in range(5):
            p.valu("v_fma_f32", el[i], el[i], r48, m0)
            p.trans("v_exp_f32", el[i], el[i])
        l0, l1 = p.v("la3")[0], p.v("lb3")[0]
        p.valu("v_add_f32", l0, el[0], el[1])
        p.valu("v_add_f32", l1, el[2], el[3])
        p.valu("v_add_f32", l0, l0, l1)
        p.valu("v_add_f32_dpp", l1, l0, l0, dpp=True, mods=f"row_shl:4 {full} bound_ctrl:0")
        p.valu("v_add_f32_dpp", l0, l0, l1, dpp=True, mods=f"row_shl:8 {full} bound_ctrl:0")
        self.allred("v_add_f32", l0, l1)
        p.valu("v_add_f32", l0, l0, el[4])
        p.trans("v_rcp_f32", l0, l0)
        for i in range(5):
            p.valu("v_mul_f32", el[i], el[i], rk[i])
        for i in range(5):
            p.valu("v_mul_f32_dpp", el[i], l0, el[i], dpp=True, mods=f"row_newbcast:0 {full}")
        P = self.P[3] = p.vm("P3", 8, 4)
        for e in range(2):
            p.valu("v_cvt_pk_bf16_f32", P[e], el[2 * e], el[2 * e + 1])
            p.valu("v_mov_b32_dpp", P[2 + e], P[e], dpp=True, mods=f"row_shl:4 {full} bound_ctrl:0")
            p.valu("v_mov_b32_dpp", P[4 + e], P[e], dpp=True, mods=f"row_shl:8 {full} bound_ctrl:0")
        p.valu("v_cvt_pk_bf16_f32", el[4], el[4], el[4])
        p.valu("v_and_b32", P[6], el[4], k.mk48[0])
        p.valu("v_and_b32", P[7], el[4], k.mk48[1])

    def PV(self, u, ss=range(3), base=None):
        p, k = self.p, self.k
        stf = ["", " nt", " sc1", " sc0 sc1", " sc0 nt sc1"][OPT['st']]
        for s in ss:
            o = p.v(f"OP{u}_{s}", 4)
            for e in range(2):
                m = 2 * s + e
                acc = self.pool.get()
                p.mfma('med', acc.all, self.VP[m][0:4], self.P[u][0:4], 0)
                p.mfma('med', acc.all, self.VP[m][4:8], self.P[u][4:8], acc.all)
                res = self.Y[u] if u < 3 else self.car['Y3']
                p.mfma('med', acc.all, k.IZ[2 - 2 * e: 6 - 2 * e], res[4 * s:4 * s + 4], acc.all)
                p.valu("v_cvt_pk_bf16_f32", o[2 * e], acc[0], acc[1])
                p.valu("v_cvt_pk_bf16_f32", o[2 * e + 1], acc[2], acc[3])
            if u == 3:
                self.st.append(p.add('vst', "buffer_store_dwordx4 {}, {}, " + SO + ", " + base + f" offen offset:{64 * s}" + stf,
                                     [o.all, k.gst3[0]], rd=[o.all, k.gst3[0]], srd=[base, 's10'], after=self.st[-1:]))
                continue
            self.ow[u].append(p.dsw(k.aY[0], o.all, off=3072 * u + 64 * s))
            if s == 2:
                for i in range(3 * u, 3 * u + 3):
                    d = p.v(f"STG{i}", 4)
                    p.dsr(d.all, k.aStg[0], off=1024 * i, after=self.ow[u], release=(self.st[-2] if i > 1 else self.ow[u][-1]))
                    self.st.append(p.add('vst', "buffer_store_dwordx4 {}, {}, " + SO + ", " + sB0 + " offen" + stf,
                                         [d.all, k.goff[i]], rd=[d.all, k.goff[i]], srd=[sB0, 's10'], after=self.st[-1:]))


def last_mfma(p, back=1):
    return [i for i in p.ins if i.kind in MFMA][-back]


ORDERS = [
    "s8 G_0 y3 G_1:02 S_0 p8 G_1:26 V_0 rq1 S_1 V_1 V_2 V_3 V_4 V_5 v8 G_2 rq2 P_0 S_2 tl0 tl1 tq0 tl2 tq1 tq2 l1 P_1 "
    "tG0 tG1:02 tS0 tG1:26 tG2:02 tS1 tG2:26 g8 tV0:02 tS2 sm S_3 tV0:26 P_2 tV1 tP0 tV2 tP1 t20 tP2 t21 t22 l2 cy",
    "s8 G_0 y3 G_1:02 S_0 p8 G_1:26 V_0 rq1 S_1 V_1 V_2 V_3 V_4 V_5 v8 G_2 rq2 P_0 S_2 g8 tl0 S_3 tl1 tq0 tl2 tq1 tq2 l1 P_1 "
    "tG0 tG1:02 tS0 tG1:26 tG2:02 tS1 tG2:26 tV0:02 tS2 sm tV0:26 tV1 tP0 P_2:01 tV2 tP1 t20 P_2:12 tP2 t21 P_2:23 t22 l2 cy",
    "s8 G_0 y3 G_1:02 S_0 p8 G_1:26 V_0 rq1 S_1 V_1 V_2 V_3 V_4 V_5 v8 tl0 P_0 tl1 tq0 tl2 tq1 tq2 l1 G_2 rq2 tG0 S_2 "
    "tG1:02 tS0 tG1:26 P_1 tS1 tG2 g8 tV0:02 tS2 sm S_3 tV0:26 tV1 tP0 tV2 tP1 t20 P_2:01 tP2 t21 P_2:12 t22 l2 P_2:23 cy",
    "s8 G_0 y3 G_1:02 S_0 p8 G_1:26 V_0 rq1 S_1 V_1 V_2 V_3 V_4 V_5 v8 G_2 rq2 P_0 S_2 tl0 tl1 tq0 tl2 tq1 tq2 l1 P_1 "
    "tG0 tG1:02 tS0 tG1:26 tG2:02 tS1 tG2:26 tV0:02 tS2 sm tV0:26 P_2:01 tV1 P_2:12 tP0 P_2:23 tV2 tP1 t20 tP2 g8 t21 t22 l2 S_3 cy",
    "s8 G_0 y3 G_1:02 S_0 p8 G_1:26 V_0 rq1 S_1 V_1 V_2 V_3 V_4 V_5 v8 G_2 rq2 P_0 S_2 g8 tl0 S_3 tl1 tq0 tl2 tq1 tq2 l1 P_1 "
    "tG0 tG1:02 tS0 tG1:26 tG2:02 tS1 tG2:26 tV0:02 tS2 sm tV0:26 P_2:01 tV1 P_2:12 tP0 P_2:23 tV2 tP1 t20 tP2 t21 t22 l2 cy",
]


def gen_body(k, car, with_T=True):
    p = Prog()
    ldf = " nt" if OPT['ld_nt'] else ""
    pool = Pool(p, OPT['pool'])
    S = SPhase(p, k, pool, car)
    T = TPhase(p, k, 3, pool, lambda j: k.aT[j]) if with_T else None

    def t(f):
        if with_T:
            p.part = 'T'
            f()
            p.part = 'S'
    p.part = 'C'
    dm = []
    if with_T:
        p.salu("s_sub_u32", "s58", sO1, sO0)
        p.salu("s_subb_u32", "s59", "s58", 0)
        p.salu("s_sub_u32", "s56", sO2, sO1)
        p.salu("s_subb_u32", "s57", "s56", 0)
        p.salu("s_add_u32", sM0, sO2, sPL)
        for i in range(9):
            p.salu("s_add_u32", "m0", sM0, 1024 * i)
            dm.append(p.add('dma', "buffer_load_dwordx4 {}, " + SX + ", " + sB2 + " offen" + ldf + " lds", [k.goff[i]],
                            rd=[k.goff[i]], srd=['m0', sB2, 's6'], after=dm[-1:]))
    p.part = 'S'
    S.loadY(0, deadline=0)
    S.loadY(1, deadline=20)
    S.loadY(2, deadline=40)
    S.loadRQ(0, deadline=80)
    for tok in ORDERS[OPT['order']].split():
        c, arg = tok[:2], tok[2:]
        u = int(arg[0]) if arg else None
        rng = range(int(arg[2]), int(arg[3])) if len(arg) > 1 else None
        if c == 'G_':
            S.G(u, rng or range(6))
        elif c == 'S_':
            S.S(u)
        elif c == 'V_':
            S.V(u)
        elif c == 'P_':
            S.PV(u, rng or range(3))
        elif c == 's8':
            S.softmax48()
        elif c == 'p8':
            S.PV(3, rng or range(3), base=sBM)
            if not rng or rng[-1] == 2:
                p.salu("s_mov_b32", "s10", NBYTES)
        elif c == 'y3':
            S.loadY(3, release=last_mfma(p, 12))
            S.loadR(release=last_mfma(p, 8))
        elif c == 'cy':
            S.loadCarry(release=last_mfma(p, 14))
        elif c == 'rq':
            S.loadRQ(u, release=last_mfma(p, 10))
        elif c == 'g8':
            S.loadG48(release=last_mfma(p, 10))
        elif c == 'v8':
            S.loadV48(release=last_mfma(p, 10))
        elif c == 'tl':
            t(lambda: T.load([u], release=last_mfma(p, 10)))
        elif c == 'tq':
            t(lambda: T.q1(u))
        elif c == 'l1':
            t(lambda: T.ln1())
        elif c == 'tG':
            t(lambda: T.G(u, rng or range(6)))
        elif c == 'tS':
            t(lambda: T.S(u))
        elif c == 'sm':
            t(lambda: T.softmax())
        elif c == 'tV':
            t(lambda: T.V(u, rng or range(6)))
        elif c == 'tP':
            t(lambda: T.PV(u))
        elif c == 't2':
            t(lambda: T.q2(u))
        elif c == 'l2':
            t(lambda: T.ln2())
        else:
            raise ValueError(tok)
    if not with_T:
        S.softmax48()
        S.PV(3, base=sB0)
    if with_T:
        p.part = 'C'
        p.salu("s_mov_b32", sBM, sB0)
        for r, d in ((k.AT[0:2], sDT2), (k.AT[2:4], sDT2), (k.AS[0:2], sDS2), (k.AS[2:4], sDS2), (k.AE[0:2], sENT2)):
            p.valu("v_lshl_add_u64", r, r, 0, d)
        p.valu("v_add_u32", k.aRq[0], "s58", k.aRq[0])
        p.valu("v_add_u32", k.aR48[0], ENT, k.aR48[0])
        p.salu("s_mov_b32", sT0, sO0)
        p.salu("s_mov_b32", sO0, sO1)
        p.salu("s_mov_b32", sO1, sO2)
        p.salu("s_mov_b32", sO2, sT0)
        p.salu("s_mov_b32", sB0, sB1)
        p.salu("s_mov_b32", sB1, sB2)
        p.salu("s_add_u32", sWID, sWID, NWG)
        if OPT['claim']:
            p.salu("s_cmp_lt_u32", None, sWID, 11 * NWG)
            p.salu("s_cselect_b32", "s6", NBYTES, 0)
            p.salu("s_cselect_b32", sT1, sWID, sEXT)
        else:
            p.salu("s_cmp_lt_u32", None, sWID, NWIN)
            p.salu("s_cselect_b32", "s6", NBYTES, 0)
            p.salu("s_min_u32", sT1, sWID, NWIN - 1)
        winbase(p, sB2, sT1)
    bb = [i for i in p.ins if i.kind in MFMA]
    for i, d in enumerate(dm):
        kk = min((OPT['d0'] + i * OPT['dd']) // 4, len(bb) - 5)
        d.release, d.deadline = bb[kk], bb[kk + 4]
    return p, bb


def winbase(p, dst, w):
    p.salu("s_mul_hi_u32", sT2, w, 79536432)
    p.salu("s_mul_i32", sT3, sT2, 54)
    p.salu("s_sub_u32", sT3, w, sT3)
    p.salu("s_mul_i32", sT2, sT2, 7 * RS)
    p.salu("s_mul_i32", sT3, sT3, 1344)
    p.salu("s_add_u32", dst, sT2, sT3)


def hint(lst, release=None, deadline=None):
    for i in lst:
        if release is not None:
            i.release = release
        if deadline is not None:
            i.deadline = deadline


def gen_prologue(k):
    P = Prog()
    P.blks += [b for b in k.all if b is not k.WV]
    v0 = Blk('v0', 1, persistent=True)
    v0.base = 0
    P.blks.append(v0)
    tid = v0[0]
    p = P
    T = lambda n: p.v(n)[0]
    out = []

    def seg_end(sched, bb=(), pace=1.0):
        ins = p.ins
        p.ins = []
        if sched:
            order, total = schedule(ins, list(bb), verbose=True, pace=pace, long_asap=True)
            if OPT['dump'] == 3:
                print(" ".join(f"{i.t}:{i.kind}" for i in order))
        else:
            order = ins
        out.extend(order)
    R = lambda kind, text: p.ins.append(Raw(kind, text))
    R('salu', f"s_cmp_ge_u32 s2, {NWG}")
    R('branch', "s_cbranch_scc1 L_end")
    R('smem', "s_load_dwordx4 s[56:59], s[0:1], 0")
    R('smem', "s_load_dwordx4 s[60:63], s[0:1], 16")
    R('smem', "s_load_dwordx4 s[64:67], s[0:1], 32")
    lane, wv = T('lane'), T('wv')
    p.valu("v_and_b32", lane, 63, tid)
    p.valu("v_lshrrev_b32", wv, 6, tid)
    p.add('valu', "v_readfirstlane_b32 " + sWAVE + ", {}", [wv], rd=[wv], swr=[sWAVE])
    if OPT['pf']:
        pfa = T('pfa')
        R('salu', "s_getpc_b64 s[68:69]")
        p.valu("v_lshlrev_b32", pfa, 6, tid)
        R('label', "L_pf:")
        p.add('vld', "global_load_dword a250, {}, s[68:69]", [pfa], rd=[pfa])
        p.valu("v_min_u32", pfa, "L_end-L_pf-16384", pfa)
        R('salu', "s_add_u32 s68, s68, 16384")
        R('salu', "s_addc_u32 s69, s69, 0")
        p.add('vld', "global_load_dword a251, {}, s[68:69]", [pfa], rd=[pfa])
    n16, g4 = T('n16'), T('g4')
    p.valu("v_and_b32", n16, 15, lane)
    p.valu("v_lshrrev_b32", g4, 4, lane)
    a, b = T('a'), T('b')
    lin = T('lin')
    p.valu("v_lshlrev_b32", lin, 4, lane)
    aL, aRr = T('aL'), T('aRr')
    q, pp, pos, sw, row = T('q'), T('pp'), T('pos'), T('sw'), T('row')
    c78 = T('c78')
    p.valu("v_mov_b32", c78, "0x78")
    p.valu("v_lshrrev_b32", a, 2, n16)
    p.valu("v_and_b32", b, 3, n16)
    p.valu("v_lshl_add_u32", a, a, 3, b)
    p.valu("v_mul_u32_u24", aL, 576, a)
    p.valu("v_lshl_add_u32", aL, g4, 4, aL)
    p.valu("v_mul_u32_u24", aRr, 576, n16)
    p.valu("v_lshl_add_u32", aRr, g4, 4, aRr)
    if OPT['claim']:
        assert NWG == 256
        p.salu("s_mul_i32", sT2, "s2", 9)
        p.salu("s_sub_u32", sT2, sT2, 899)
        p.salu("s_mul_hi_u32", sT3, sT2, 42949673)
        p.salu("s_mul_i32", sT3, sT3, 100)
        p.salu("s_sub_u32", sT2, sT2, sT3)
        p.salu("s_cmp_lt_u32", None, "s2", 100)
        p.salu("s_cselect_b32", sT2, "s2", sT2)
        p.salu("s_sub_u32", sT3, "s2", 198)
        p.salu("s_cmp_ge_u32", None, "s2", 200)
        p.salu("s_cselect_b32", sT2, sT3, sT2)
        p.salu("s_add_u32", sEXT, sT2, 11 * NWG)
        p.salu("s_mov_b32", sNWIN, 11)
        p.salu("s_mov_b32", sIT, 0)
    else:
        p.salu("s_cmp_lt_u32", None, "s2", NWIN - 11 * NWG)
        p.salu("s_cselect_b32", sNWIN, 12, 11)
    winbase(p, sB0, "s2")
    p.salu("s_add_u32", sWID, "s2", NWG)
    winbase(p, sB1, sWID)
    p.salu("s_add_u32", sWID, sWID, NWG)
    winbase(p, sB2, sWID)
    p.salu("s_mov_b32", sBM, sB0)
    p.salu("s_mov_b32", sEPS, f32(C96))
    p.salu("s_mov_b32", sO0, 0)
    p.salu("s_mov_b32", sO1, BUFSZ)
    p.salu("s_mov_b32", sO2, 2 * BUFSZ)
    p.salu("s_mul_i32", sPL, sWAVE, PLANE)
    R('wait', "s_waitcnt lgkmcnt(0)")
    for d, s in (("s4", "s56"), ("s5", "s57"), ("s8", "s66"), ("s9", "s67")):
        p.salu("s_mov_b32", d, s)
    p.salu("s_mov_b32", "s6", NBYTES)
    p.salu("s_mov_b32", "s7", "0x00020000")
    p.salu("s_mov_b32", "s10", 0)
    p.salu("s_mov_b32", "s11", "0x00020000")
    p.salu("s_cmp_ge_u32", None, sWAVE, 2)
    p.salu("s_cselect_b32", "s12", "s62", "s58")
    p.salu("s_cselect_b32", "s13", "s63", "s59")
    p.salu("s_cselect_b32", "s16", "s64", "s60")
    p.salu("s_cselect_b32", "s17", "s65", "s61")
    p.salu("s_mov_b32", "s14", 55296)
    p.salu("s_mov_b32", "s15", "0x00020000")
    p.salu("s_mov_b32", "s18", 18432)
    p.salu("s_mov_b32", "s19", "0x00020000")
    p.salu("s_mov_b32", sM0, F_BT)
    p.salu("s_cselect_b32", sM0, F_BS, sM0)
    p.salu("s_and_b32", sT0, sWAVE, 1)
    p.salu("s_mul_i32", sT1, sT0, 384)
    R('branch', "s_cbranch_scc1 L_fold_a")
    for ct in range(6):
        p.salu("s_mov_b32", sKA, 16 * ct * 576 + 192)
        for si in range(3):
            q_ = 72 + 4 * (3 * ct + si)
            p.add('vld', f"buffer_load_dwordx4 a[{q_}:{q_ + 3}], {{}}, {SW}, {sKA} offen offset:{64 * si}", [aRr], rd=[aRr], srd=[sKA])
    R('branch', "s_branch L_fold_c")
    R('label', "L_fold_a:")
    for i in range(18):
        p.salu("s_add_u32", "m0", sM0, 1024 * i)
        p.salu("s_mov_b32", sKA, 1024 * i)
        p.add('dma', f"buffer_load_dwordx4 {{}}, {SW2}, {sKA} offen lds", [lin], rd=[lin], srd=['m0', sKA])
    R('label', "L_fold_c:")
    seg_end(False)
    Lld = {}

    def loadL(kt, **kw):
        row_ = 32 * (kt >> 1) + 4 * (kt & 1)
        sr = ("s62", "s63", "s64", "s65", "s66", "s67")[kt]
        p.salu("s_add_u32", sr, sT1, row_ * 576)
        for si in range(3):
            q_ = 4 * (3 * kt + si)
            nm = f"a[{q_}:{q_ + 3}]"
            Lld[nm] = p.add('vld', f"buffer_load_dwordx4 {nm}, {{}}, {SW}, {sr} offen offset:{64 * si}", [aL], rd=[aL], srd=[sr], swr=[nm],
                            after=list(Lld.values())[-1:], **kw)
    NL0 = OPT['nl0']
    for kt in range(NL0):
        loadL(kt, deadline=0)
    cmp = lambda op, pair, c, v: p.add('valu', f"{op} {pair}, {c}, {{}}", [v], rd=[v], srd=Prog._sregs([c]), swr=Prog._sregs([pair]))
    sel = lambda d, f, t_, pair: p.valu("v_cndmask_b32_e64", d, f, t_, pair)
    PA, PB = "s[68:69]", "s[70:71]"

    def sigma(d, x):
        p.valu("v_and_b32", d, 3, x)
        p.valu("v_lshlrev_b32", d, 1, d)
        p.valu("v_lshrrev_b32", d, d, c78)

    def pixoff(d, px):
        p.valu("v_mul_u32_u24", row, 9363, px)
        p.valu("v_lshrrev_b32", row, 16, row)
        p.valu("v_mul_u32_u24", row, RS - 7 * 192, row)
        p.valu("v_mul_u32_u24", d, 192, px)
        p.valu("v_add_u32", d, d, row)
    tbase, oob, tt, ppx = T('tbase'), T('oob'), T('tt'), T('ppx')
    p.salu("s_mul_i32", sT2, sWAVE, TS)
    p.valu("v_mov_b32", tbase, sT2)
    p.valu("v_mov_b32", oob, OOB)
    p.valu("v_and_b32", tt, 3, n16)
    p.valu("v_lshrrev_b32", ppx, 2, n16)
    for i in range(9):
        p.valu("v_add_u32", q, 64 * i, lane)
        p.valu("v_mul_u32_u24", pp, 5462, q)
        p.valu("v_lshrrev_b32", pp, 16, pp)
        p.valu("v_mul_u32_u24", pos, 12, pp)
        p.valu("v_sub_u32", pos, q, pos)
        p.valu("v_lshrrev_b32", a, 2, pp)
        sigma(sw, a)
        p.valu("v_bfe_u32", a, pp, 1, 1)
        p.valu("v_xor_b32", sw, sw, a)
        p.valu("v_xor_b32", sw, sw, wv)
        p.valu("v_and_b32", sw, 3, sw)
        p.valu("v_xor_b32", pos, pos, sw)
        pixoff(a, pp)
        p.valu("v_lshl_add_u32", b, pos, 4, tbase)
        p.valu("v_add_u32", k.goff[i], a, b)
    p.valu("v_add_u32", k.aStg[0], sPL, lin)
    cmp("v_cmp_eq_u32", PB, 0, n16)
    p.valu("v_lshl_add_u32", a, g4, 4, tbase)
    p.valu("v_add_u32", a, 6 * RS + 6 * 192, a)
    sel(k.gst3[0], oob, a, PB)
    e48 = T('e48')
    p.valu("v_mul_u32_u24", e48, 192, wv)
    p.valu("v_add_u32", e48, TAB, e48)
    p.valu("v_lshl_add_u32", b, g4, 4, e48)
    cmp("v_cmp_eq_u32", PA, 0, tt)
    sel(k.aY48[0], oob, b, PA)
    p.valu("v_mov_b32", a, "0x3f803f80")
    for i in range(4):
        sel(k.ones[i], 0, a, PA)
    p.add('valu', f"v_cmp_eq_u32 {PA}, {{}}, {{}}", [tt, g4], rd=[tt, g4], swr=['s68', 's69'])
    p.valu("v_lshl_add_u32", a, ppx, 3, e48)
    p.valu("v_add_u32", a, T_V, a)
    sel(k.aV48[0], oob, a, PA)
    p.valu("v_lshlrev_b32", a, 2, wv)
    p.valu("v_add_u32", k.aR48[0], TAB + T_R, a)
    rb = T('rb')
    p.valu("v_mul_u32_u24", rb, 192, wv)
    p.valu("v_add_u32", rb, RTAB, rb)
    p.valu("v_lshl_add_u32", k.aRrow[0], g4, 4, rb)
    p.valu("v_lshl_add_u32", k.aRcol[0], n16, 2, rb)
    cmp("v_cmp_eq_u32", PA, 3, ppx)
    sel(a, ppx, 0, PA)
    p.valu("v_lshl_add_u32", a, a, 6, k.aRrow[0])
    cmp("v_cmp_eq_u32", PA, 0, tt)
    sel(k.aRq[0], oob, a, PA)
    sigma(sw, ppx)
    p.valu("v_xor_b32", sw, sw, g4)
    p.valu("v_mul_u32_u24", b, 192, n16)
    p.valu("v_xor_b32", sw, sw, wv)
    p.valu("v_bfe_u32", a, n16, 1, 1)
    p.valu("v_xor_b32", sw, sw, a)
    p.valu("v_and_b32", a, 3, sw)
    p.valu("v_lshl_add_u32", a, a, 4, b)
    p.valu("v_add_u32", k.aY[0], sPL, a)
    lo16, hi16 = T('lo16'), T('hi16')
    p.valu("v_mov_b32", lo16, "0xffff")
    p.valu("v_mov_b32", hi16, "0xffff0000")
    for e in range(2):
        cmp("v_cmp_eq_u32", PA, 2 * e, g4)
        cmp("v_cmp_eq_u32", PB, 2 * e + 1, g4)
        sel(a, 0, lo16, PA)
        sel(k.mk48[e], a, hi16, PB)
    lo = p.v('lo')
    ldf = " nt" if OPT['ld_nt'] else ""
    aT3, aV3, a1 = Blk('aT3', 1, persistent=True), Blk('aV3', 1, persistent=True), Blk('a1', 1, liveout=True)
    aT3.base, aV3.base, a1.base = k.low - 1, k.low - 2, k.low - 3
    X3 = Blk('X3', 20, liveout=True)
    X3.base = 2
    p.blks += [aT3, aV3, a1, X3]
    ii, ww = T('ii'), T('ww')
    p.valu("v_lshl_add_u32", ii, wv, 2, ppx)
    p.valu("v_mul_u32_u24", ww, NWG, ii)
    p.valu("v_add_u32", ww, "s2", ww)
    if OPT['claim']:
        p.valu("v_mov_b32", a, sEXT)
        cmp("v_cmp_eq_u32", PA, 11, ii)
        sel(ww, ww, a, PA)
    p.salu("s_mov_b32", sT2, 79536432)
    p.valu("v_mul_hi_u32", a, ww, sT2)
    p.valu("v_mul_u32_u24", b, 54, a)
    p.valu("v_sub_u32", b, ww, b)
    p.salu("s_mov_b32", sT3, 7 * RS)
    p.valu("v_mul_lo_u32", a, a, sT3)
    p.valu("v_mul_u32_u24", b, 1344, b)
    p.salu("s_mov_b32", sT2, TS)
    p.valu("v_mul_lo_u32", q, tt, sT2)
    p.valu("v_add3_u32", a, a, b, q)
    p.valu("v_add_u32", a, 6 * RS + 6 * 192, a)
    p.valu("v_lshl_add_u32", a, g4, 4, a)
    cmp("v_cmp_gt_u32", PA, 12 if OPT['claim'] else sNWIN, ii)
    sel(lo[0], oob, a, PA)
    xl = [Ins('vld', f"buffer_load_dwordx4 a[{144 + 4 * s_}:{147 + 4 * s_}], {{}}, {SX}, 0 offen offset:{64 * s_}" + ldf, [lo[0]], [], [lo[0]])
          for s_ in range(3)]
    p.valu("v_mul_u32_u24", a, ENT, ii)
    p.valu("v_mul_u32_u24", b, 192, tt)
    p.valu("v_add_u32", a, TAB, a)
    p.valu("v_add_u32", a, a, b)
    cmp("v_cmp_gt_u32", PA, 12, ii)
    p.valu("v_lshl_add_u32", b, g4, 4, a)
    sel(aT3[0], oob, b, PA)
    p.valu("v_lshl_add_u32", b, g4, 3, a)
    sel(aV3[0], oob, b, PA)
    for j in range(3):
        p.valu("v_mul_u32_u24", pp, 12, wv)
        p.valu("v_add3_u32", pp, pp, ppx, 4 * j)
        p.valu("v_lshrrev_b32", a, 2, pp)
        sigma(sw, a)
        p.valu("v_bfe_u32", a, pp, 1, 1)
        p.valu("v_xor_b32", sw, sw, a)
        p.valu("v_xor_b32", sw, sw, tt)
        p.valu("v_xor_b32", sw, sw, g4)
        p.valu("v_and_b32", sw, 3, sw)
        p.valu("v_mul_u32_u24", a, PLANE, tt)
        p.valu("v_mul_u32_u24", b, 192, pp)
        p.valu("v_add_u32", a, a, b)
        p.valu("v_lshl_add_u32", k.aT[j], sw, 4, a)
    jj = T('jj')
    p.valu("v_sub_u32", jj, ppx, g4)
    p.valu("v_and_b32", jj, 3, jj)
    p.valu("v_mul_u32_u24", a, 12, wv)
    p.valu("v_lshl_add_u32", a, jj, 2, a)
    p.valu("v_add_u32", a, a, g4)
    p.valu("v_mul_u32_u24", b, 48, tt)
    p.valu("v_add_u32", a, a, b)
    p.valu("v_lshlrev_b32", a, 2, a)
    p.valu("v_add_u32", a, RTAB, a)
    p.valu("v_lshl_add_u32", b, wv, 2, g4)
    cmp("v_cmp_gt_u32", PA, 12, b)
    p.valu("v_mul_u32_u24", b, ENT, b)
    p.valu("v_lshl_add_u32", b, tt, 2, b)
    p.valu("v_add_u32", b, TAB + T_R, b)
    sel(b, oob, b, PA)
    for j in range(1, 4):
        cmp("v_cmp_ne_u32", MRG[j], j, jj)
        cmp("v_cmp_eq_u32", SEL[j], j, tt)
    sel(k.aRw[0], b, a, MRG[3])
    cmp("v_cmp_eq_u32", PA, 0, jj)
    sel(k.diag[0], 0, -1, PA)
    one_lo, one_hi = T('one_lo'), T('one_hi')
    p.valu("v_mov_b32", one_lo, "0x3f80")
    p.valu("v_mov_b32", one_hi, "0x3f800000")
    sel(a, one_lo, one_hi, SEL[1])
    sel(a, a, 0, SEL[2])
    sel(a, a, 0, SEL[3])
    p.valu("v_and_b32", k.IZ[2], a, k.diag[0])
    sel(a, 0, one_lo, SEL[2])
    sel(a, a, one_hi, SEL[3])
    p.valu("v_and_b32", k.IZ[3], a, k.diag[0])
    for i in (0, 1, 4, 5):
        p.valu("v_mov_b32", k.IZ[i], 0)
    mpos = T('mpos')
    p.valu("v_lshrrev_b32", a, 3, n16)
    p.valu("v_lshlrev_b32", a, 4, a)
    p.valu("v_and_b32", b, 7, n16)
    p.valu("v_add_u32", a, a, b)
    p.valu("v_and_b32", b, 1, g4)
    p.valu("v_lshl_add_u32", a, b, 3, a)
    p.valu("v_lshrrev_b32", b, 1, g4)
    p.valu("v_lshl_add_u32", a, b, 5, a)
    p.valu("v_lshlrev_b32", mpos, 4, a)
    p.valu("v_add_u32", a1[0], F_AS, mpos)
    p.valu("v_add_u32", k.aW[0], F_BS, mpos)
    aFw = T('aFw')
    p.valu("v_lshrrev_b32", a, 3, n16)
    p.valu("v_lshl_add_u32", aFw, a, 2, tt)
    p.valu("v_bfe_u32", q, n16, 2, 1)
    p.valu("v_and_b32", a, 1, g4)
    p.valu("v_lshrrev_b32", b, 1, g4)
    p.valu("v_lshl_add_u32", aFw, a, 3, aFw)
    p.valu("v_lshl_add_u32", aFw, b, 5, aFw)
    p.valu("v_lshl_add_u32", aFw, q, 6, aFw)
    p.valu("v_lshlrev_b32", aFw, 4, aFw)
    p.salu("s_mov_b32", sT2, F_AT)
    p.salu("s_cmp_eq_u32", None, sWAVE, 1)
    p.salu("s_cselect_b32", sT2, F_BT, sT2)
    p.salu("s_cmp_eq_u32", None, sWAVE, 2)
    p.salu("s_cselect_b32", sT2, F_AS, sT2)
    p.salu("s_cmp_eq_u32", None, sWAVE, 3)
    p.salu("s_cselect_b32", sT2, F_BS, sT2)
    p.valu("v_add_u32", aFw, sT2, aFw)
    atr = T('atr')
    p.valu("v_lshlrev_b32", a, 3, g4)
    p.valu("v_add_u32", a, a, ppx)
    p.valu("v_mul_u32_u24", a, 192, a)
    p.valu("v_lshl_add_u32", a, tt, 3, a)
    p.valu("v_add_u32", atr, sM0, a)
    nx = 0
    if OPT['xearly']:
        dm = list(Lld.values())[-1:]
        for i in range(9):
            p.salu("s_add_u32", "m0", sPL, 1024 * i)
            dm.append(p.add('dma', "buffer_load_dwordx4 {}, " + SX + ", " + sB0 + " offen" + ldf + " lds", [k.goff[i]],
                            rd=[k.goff[i]], srd=['m0', sB0], after=dm[-1:]))
        for i in xl:
            i.after = dm[-1:]
            dm.append(i)
            p.ins.append(i)
        nx = 12
    seg_end(True)
    kap_a, kap_b = math.sqrt(96) * math.log2(math.e), math.sqrt(96)
    p.salu("s_cmp_lg_u32", None, sT0, 0)
    p.salu("s_mov_b32", sKA, f32(kap_a))
    p.salu("s_cselect_b32", sKA, f32(kap_b), sKA)
    p.salu("s_cselect_b32", sKB, 0, f32(-kap_a / 96))
    R('wait', f"s_waitcnt vmcnt({3 * NL0 + nx})")
    p.ins[-1].stamp_before = True
    R('branch', "s_cbranch_scc0 L_fold_d")
    for ct in range(6):
        for si in range(3):
            q0 = 72 + 4 * (3 * ct + si)
            for e in range(2):
                p.add('dsr', f"ds_read_b64_tr_b16 a[{q0 + 2 * e}:{q0 + 2 * e + 1}], {{}} offset:{(32 * si + 4 * e) * 192 + 32 * ct}", [atr], rd=[atr])
    R('wait', "s_waitcnt lgkmcnt(0)")
    R('label', "L_fold_d:")
    seg_end(False)
    for kt in range(NL0, 6):
        loadL(kt)
    dm = list(Lld.values())[-1:]
    for i in range(0 if OPT['xearly'] else 9):
        p.salu("s_add_u32", "m0", sPL, 1024 * i)
        dm.append(p.add('dma', "buffer_load_dwordx4 {}, " + SX + ", " + sB0 + " offen" + ldf + " lds", [k.goff[i]],
                        rd=[k.goff[i]], srd=['m0', sB0], after=dm[-1:]))
    for i in ([] if OPT['xearly'] else xl):
        i.after = dm[-1:]
        dm.append(i)
        p.ins.append(i)
    D = [[p.v(f"D{kt}_{ct}", 4) for ct in range(6)] for kt in range(6)]
    bb = []
    cs = [p.v(f"cs{ct}", 2) for ct in range(6)]
    RSL, pend = [], []
    c2 = p.v("c2", 2)
    p.valu("v_mov_b32", c2[0], sKA)
    p.valu("v_mov_b32", c2[1], sKB)
    for kt in range(6):
        for ct in range(6):
            for si in range(3):
                qa, qb = 4 * (3 * kt + si), 72 + 4 * (3 * ct + si)
                nm = f"a[{qa}:{qa + 3}]"
                m_ = p.mfma('med', D[kt][ct].all, nm, f"a[{qb}:{qb + 3}]", D[kt][ct].all if si else 0)
                m_.wait_for = [Lld[nm]]
                m_.after.append(Lld[nm])
                if ct == 0 and si == 0:
                    m_.after += pend
                bb.append(m_)
        last = bb[-1]
        rs = p.v(f"rs{kt}", 4)
        RSL.append(rs)
        for r in range(4):
            p.valu("v_add_f32", rs[r], D[kt][0][r], D[kt][1][r])
            for ct in range(2, 6):
                p.valu("v_add_f32", rs[r], rs[r], D[kt][ct][r])
        for rot in (8, 4, 2, 1):
            for r in range(4):
                p.valu("v_add_f32_dpp", rs[r], rs[r], rs[r], dpp=True, mods=f"row_ror:{rot} row_mask:0xf bank_mask:0xf")
        for k2 in ([kt - 1] if 0 < kt < 5 else [4, 5] if kt == 5 else []):
            grp = []
            for h in range(2):
                grp.append(p.valu("v_pk_mul_f32", RSL[k2][2 * h:2 * h + 2], RSL[k2][2 * h:2 * h + 2], c2.all,
                                  mods="op_sel:[0,1] op_sel_hi:[1,1]", release=last))
            for ct in range(6):
                for h in range(2):
                    d = D[k2][ct][2 * h:2 * h + 2]
                    grp.append(p.valu("v_pk_fma_f32", d, d, c2.all, RSL[k2][2 * h:2 * h + 2], mods="op_sel_hi:[1,0,1]", release=last))
                if k2 == 0:
                    grp.append(p.valu("v_pk_add_f32", cs[ct].all, D[0][ct][0:2], D[0][ct][2:4], release=last))
                else:
                    for h in range(2):
                        grp.append(p.valu("v_pk_add_f32", cs[ct].all, cs[ct].all, D[k2][ct][2 * h:2 * h + 2], release=last))
            pend = grp
    for ct in range(6):
        p.valu("v_add_f32", cs[ct][0], cs[ct][0], cs[ct][1])
        for sw_ in (p.swap32, p.swap16):
            p.valu("v_mov_b32", cs[ct][1], cs[ct][0])
            sw_(cs[ct][0], cs[ct][1])
            p.valu("v_add_f32", cs[ct][0], cs[ct][0], cs[ct][1])
        p.valu("v_mul_f32", cs[ct][0], f32(-1.0 / 96), cs[ct][0])
    nw = 0
    fw = []
    for ct in range(6):
        for s in range(3):
            o = p.v(f"fo{s}_{ct}", 4)
            for e in range(2):
                kt = 2 * s + e
                for h in range(2):
                    d = D[kt][ct][2 * h:2 * h + 2]
                    p.valu("v_pk_add_f32", d, d, cs[ct].all, mods="op_sel_hi:[1,0]", release=(fw[-2] if len(fw) > 1 else bb[-1]))
                    p.valu("v_cvt_pk_bf16_f32", o[2 * e + h], D[kt][ct][2 * h], D[kt][ct][2 * h + 1])
            fw.append(p.dsw(aFw, o.all, off=(ct >> 1) * 6144 + s * 2048 + (ct & 1) * 256, deadline=0))
            nw += 1
    for kt in range(NL0, 6):
        for si in range(3):
            i = Lld[f"a[{4 * (3 * kt + si)}:{4 * (3 * kt + si) + 3}]"]
            kk = max(0, 18 * (kt - NL0) + 6 * si - 6)
            i.release, i.deadline = (bb[kk] if kk else None), bb[kk + 1]
    for n_, i in enumerate(dm[1:]):
        kk = min(18 * (6 - NL0) + 3 * n_, 106)
        i.release, i.deadline = bb[kk], bb[kk + 1]
    seg_end(True, bb, pace=OPT['fpace'] / 100.0)
    R('wait', "s_waitcnt lgkmcnt(0) vmcnt(0)")
    p.ins[-1].stamp_before = True
    bb[-1].stamp_before = True
    for i in range(12):
        d = X3[2 + 6 * (i >> 2) + (i & 3)]
        p.add('valu', f"v_accvgpr_read_b32 {{}}, a{144 + i}", [d], wr=[d])
    R('barrier', "s_barrier")
    seg_end(False)
    for t_, i in enumerate(out):
        i.t = t_
    assert allocate(out, p.blks, verbose=True)
    seq, _ = insert_waits(out, hoist=False)
    seq, _ = fix_hazards(seq)
    print(f"  prologue: {len(seq)} instr, estimate {estimate(seq) * 4} cycles")
    return seq, dict(X3=X3, aT3=aT3, aV3=aV3, a1=a1)


def gen_first(k, pr):
    p = Prog()
    aT3, aV3, a1 = pr['aT3'], pr['aV3'], pr['a1']
    a1.persistent = True
    p.blks += k.all + [aT3, aV3, a1]
    pool = Pool(p, 6)
    T = TPhase(p, k, 4, pool, lambda j: k.aT[j] if j < 3 else aT3[0])
    T.X[3].base, T.X[3].carried = pr['X3'].base, True
    wr = {}

    def wread(name, addr, off):
        wr[name] = p.add('dsr', f"ds_read_b128 {name}, {{}} offset:{off}", [addr], rd=[addr], swr=[name])
        return wr[name]
    T.load(range(3), deadline=0)
    early = [wread(aAT(m, s), a1[0], medoff(m, s) + F_AT - F_AS) for m in range(6) for s in range(3)]
    late = [wread(aBT(m, s), a1[0], medoff(m, s) + F_BT - F_AS) for m in range(6) for s in range(3)]
    late += [wread(aAS(m, s), a1[0], medoff(m, s)) for m in range(6) for s in range(3)]
    late += [wread(aBS(m, s), k.aW[0], medoff(m, s)) for m in range(6) for s in range(3) if 3 * m + s < 10]
    for f in range(10, 10 + OPT['wv']):
        late.append(p.dsr(k.WV[4 * (f - 10):4 * (f - 10) + 4], k.aW[0], off=medoff(f // 3, f % 3)))
    ldf = " nt" if OPT['ld_nt'] else ""
    dm = []
    for i in range(9):
        p.salu("s_add_u32", "m0", sPL, BUFSZ + 1024 * i)
        dm.append(p.add('dma', "buffer_load_dwordx4 {}, " + SX + ", " + sB1 + " offen" + ldf + " lds", [k.goff[i]],
                        rd=[k.goff[i]], srd=['m0', sB1], after=dm[-1:], deadline=40 * i))
    bar = p.add('barrier', "s_barrier", [], after=early + late)
    bar.wait_for = early + late
    n0 = len(p.ins)
    for j in (3, 0, 1, 2):
        T.q1(j)
    T.ln1()
    for m in range(6):
        for j in range(4):
            T.G(j, [m])
    for j in range(4):
        T.S(j)
    T.softmax()
    T.V(3)
    T.V(0)
    T.PV(3)
    T.V(1)
    T.q2(3)
    T.PV(0)
    G48 = p.vm("G48", 12, 4)
    for m in range(6):
        acc = pool.get()
        for s in range(3):
            p.mfma('med', acc.all, aAS(m, s), T.YP[3][4 * s:4 * s + 4], acc.all if s else 0)
        p.valu("v_cvt_pk_bf16_f32", G48[2 * m], acc[0], acc[1])
        p.valu("v_cvt_pk_bf16_f32", G48[2 * m + 1], acc[2], acc[3])
    for s in range(3):
        T.ywr.append(p.dsw(aT3[0], G48[4 * s:4 * s + 4], off=T_G + 64 * s))
    T.V(2)
    T.PV(1)
    T.q2(0)
    T.PV(2)
    T.q2(1)
    for m in range(6):
        acc = pool.get()
        o = p.v(f"V48_{m}", 2)
        W = wBS(p, k, m)
        for s in range(3):
            p.mfma('med', acc.all, W[s], T.YP[3][4 * s:4 * s + 4], acc.all if s else 0)
        p.valu("v_cvt_pk_bf16_f32", o[0], acc[0], acc[1])
        p.valu("v_cvt_pk_bf16_f32", o[1], acc[2], acc[3])
        T.ywr.append(p.dsw(aV3[0], o.all, off=T_V + 32 * m))
        if m == 1:
            T.q2(2)
            T.ln2()
    for i in p.ins[n0:]:
        if i.kind == 'med':
            for o in i.ops[1:3]:
                if isinstance(o, str) and o in wr:
                    i.srd.append(o)
                    i.wait_for = [wr[o]]
    for i in T.ywr:
        i.after.append(bar)
    for j in range(3):
        p.valu("v_add_u32", k.aT[j], BUFSZ, k.aT[j])
    a = p.v("a")[0]
    p.valu("v_add_u32", k.aRw[0], BUFSZ, k.aRw[0])
    p.valu("v_mov_b32", a, OOB)
    p.valu("v_cndmask_b32_e64", k.aRw[0], a, k.aRw[0], MRG[3])
    bb = [i for i in p.ins if i.kind in MFMA]
    hint(early, release=bb[0])
    for n_, i in enumerate(late):
        i.release, i.deadline = bb[14 + 3 * n_ // 2], bb[44 + 3 * n_ // 2]
    order, total = schedule(p.ins, bb, verbose=True, long_asap=True)
    if OPT['dump'] == 2:
        dump_sched(order)
    assert allocate(order, p.blks, verbose=True)
    seq, _ = insert_waits(order)
    seq, n = fix_hazards(seq)
    print(f"  first: {len(seq)} instr, nops {n}, estimate {estimate(seq) * 4} cycles")
    return seq


STAMP_N = [0]


def stamp(L, idx_text=None):
    if not OPT['stamp']:
        return
    L.append("    s_memtime s[72:73]")
    L.append("    s_memrealtime s[74:75]")
    L.append("    s_waitcnt lgkmcnt(0)")
    L.append("    v_accvgpr_read_b32 v0, a255")
    L.append("    v_mov_b32 v0, s72")
    L.append("    s_nop 1")
    L.append("    buffer_store_dword v0, off, s[76:79], s80")
    L.append("    s_nop 1")
    L.append("    v_mov_b32 v0, s74")
    L.append("    s_nop 1")
    L.append("    buffer_store_dword v0, off, s[76:79], s80 offset:4")
    L.append("    s_add_u32 s80, s80, 8")


HELD = []


def stamp_hold(L):
    if not OPT['stamp']:
        return
    r = 84 + 2 * len(HELD)
    HELD.append(r)
    L.append("    s_memtime s[72:73]")
    L.append("    s_memrealtime s[74:75]")
    L.append("    s_waitcnt lgkmcnt(0)")
    L.append(f"    s_mov_b32 s{r}, s72")
    L.append(f"    s_mov_b32 s{r + 1}, s74")


def stamp_flush(L):
    for r in HELD:
        L.append(f"    v_mov_b32 v0, s{r}")
        L.append("    s_nop 1")
        L.append("    buffer_store_dword v0, off, s[76:79], s80")
        L.append("    s_nop 1")
        L.append(f"    v_mov_b32 v0, s{r + 1}")
        L.append("    s_nop 1")
        L.append("    buffer_store_dword v0, off, s[76:79], s80 offset:4")
        L.append("    s_add_u32 s80, s80, 8")


def align8(text):
    import subprocess, re, tempfile
    lines = text.split("\n")
    a = next(i for i, l in enumerate(lines) if l.startswith(NAME + "_kernel:"))
    b = next(i for i, l in enumerate(lines) if l.strip() == "s_endpgm")
    d = tempfile.mkdtemp()
    open(d + "/a.s", "w").write(text)
    subprocess.check_call(["clang", "-x", "assembler", "-target", "amdgcn-amd-amdhsa", "-mcpu=gfx950", "-c", d + "/a.s", "-o", d + "/a.o"])
    dis = subprocess.check_output(["llvm-objdump", "-d", "--mcpu=gfx950", d + "/a.o"]).decode()
    sizes = []
    for l in dis.split("\n"):
        m = re.search(r"// ([0-9A-F]{12}): ((?:[0-9A-F]{8} ?)+)", l)
        if m:
            sizes.append((l.split()[0], 4 * len(m.group(2).split())))
    items = []
    si = 0
    for i in range(a + 1, b + 1):
        for l in lines[i].split("\n"):
            t = l.strip()
            if not t or t.startswith(";") or t.endswith(":"):
                continue
            if t.startswith(".p2align"):
                while sizes[si][0] == "s_nop" and si < len(sizes) and sum(x[1] for x in sizes[:si]) % 64:
                    si += 1
                items.append((i, 'align'))
                continue
            items.append((i, sizes[si][1]))
            si += 1
    wide = re.compile(r"^\s*(v_(mov_b32|add_f32|mul_f32|max_f32|and_b32|xor_b32|or_b32|add_u32|sub_u32|lshlrev_b32|lshrrev_b32|mul_u32_u24|exp_f32|rcp_f32|rsq_f32)) ")
    par = 0
    last4 = None
    nw = nn = 0
    for n, (i, sz) in enumerate(items):
        if sz == 'align':
            par, last4 = 0, None
            continue
        if sz == 4:
            par ^= 1
            last4 = i
            continue
        if par:
            run = 0
            for j, s2 in items[n:n + 12]:
                if s2 != 8 or "mfma" in lines[j]:
                    break
                run += 1
            m = wide.match(lines[last4])
            if m and run >= 3:
                lines[last4] = lines[last4].replace(m.group(1), m.group(1) + "_e64", 1)
                par = 0
                nw += 1
            elif run >= 10:
                lines[i] = "    s_nop 0\n" + lines[i]
                par = 0
                nn += 1
    print(f"  alignment: widened {nw}, padded {nn}")
    return "\n".join(lines)


def dump_sched(order):
    line = ""
    for i in order:
        if i.kind in MFMA:
            print(line)
            line = f"{i.t:5d} {i.part:2s} {i.kind} {i.wr[0][0].name:8s}|"
        else:
            nm = i.wr[0][0].name if i.wr else (i.rd[-1][0].name if i.rd else '')
            line += f" {i.fmt.split()[0].replace('v_', '').replace('_f32', '').replace('_b32', '')[:7]}:{nm}"
    print(line)


def build(k, car, with_T, tail):
    p, bb = gen_body(k, car, with_T)
    p.blks += k.all
    order, total = schedule(p.ins, bb, verbose=True, lookahead=OPT['lookahead'], pace=OPT['pace'] / 100.0, long_asap=True)
    if OPT['dump'] == 1 and with_T:
        dump_sched(order)
    assert allocate(order, p.blks, verbose=2), "register allocation failed"
    seq, _ = insert_waits(order)
    seq += tail
    return seq


def main(path):
    RES['vm_st'] = OPT['vmst']
    RES['lat'] = OPT['lat']
    RES['q_lds'] = OPT['qlds']
    k = K()
    pro, pr = gen_prologue(k)
    first = gen_first(k, pr)
    tail = [Raw('salu', f"s_sub_u32 {sCNT}, {sCNT}, 1"), Raw('salu', f"s_cmp_lg_u32 {sCNT}, 0"),
            Raw('wait', "VMWAIT"), Raw('barrier', "s_barrier"), Raw('branch', "s_cbranch_scc1 L_loop")]
    if OPT['claim']:
        tail = [Raw('salu', f"s_sub_u32 {sCNT}, {sCNT}, 1"), Raw('salu', f"s_add_u32 {sIT}, {sIT}, 1"),
                Raw('salu', f"s_sub_u32 {sT0}, {sIT}, 8"), Raw('salu', f"s_cmp_lt_u32 {sT0}, 2"), Raw('wait', "VMWAIT"),
                Raw('branch', "s_cbranch_scc1 L_claim"), Raw('barrier', "s_barrier"), Raw('salu', f"s_cmp_lg_u32 {sCNT}, 0"),
                Raw('branch', "s_cbranch_scc1 L_loop")]
    car = {}
    loop = build(k, car, True, tail)
    vm = [i for i in loop if i.kind in ('dma', 'vst', 'vld')]
    younger = len(vm) - 1 - max(n for n, i in enumerate(vm) if i.kind == 'dma')
    for n, i in enumerate(loop):
        if i.kind == 'wait' and i.fmt == "VMWAIT":
            loop[n] = Raw('wait', f"s_waitcnt vmcnt({younger}) lgkmcnt(0)")
    loop, n = fix_hazards(loop, wrap=loop)
    print(f"  loop: {len(loop)} instr, nops {n}, estimate {estimate(loop) * 4} cycles, vmcnt({younger})")
    if OPT['exp'] == 3:
        loop = loop[:-2] + [Raw('nop', "s_nop 15", n=16) for _ in range(12)] + loop[-2:]
    e0 = build(k, car, False, [])
    e0, n = fix_hazards(e0, wrap=loop)
    print(f"  last: {len(e0)} instr, nops {n}, estimate {estimate(e0) * 4} cycles")
    e1 = []
    L = []
    hdr = open(os.path.join(os.path.dirname(os.path.abspath(__file__)), "header.txt")).read().rstrip("\n")
    L.append(hdr)
    L.append(f"; @launch grid=({NWG},1,1) block=(256,1,1) lds={LDS_BYTES}")
    L.append(f""".amdgcn_target "amdgcn-amd-amdhsa--gfx950"
.text
.globl {NAME}_kernel
.p2align 8
.type {NAME}_kernel,@function
{NAME}_kernel:""")
    em = lambda seq: [L.append(("" if i.kind == 'label' else "    ") + i.text()) for i in seq]
    if OPT['stamp']:
        L.append("""    s_memtime s[72:73]
    s_memrealtime s[74:75]
    s_load_dwordx2 s[76:77], s[0:1], 56
    v_lshrrev_b32 v1, 6, v0
    s_mov_b32 s78, 0x1000000
    s_mov_b32 s79, 0x00020000
    v_readfirstlane_b32 s81, v1
    s_lshl_b32 s80, s2, 2
    s_add_u32 s80, s80, s81
    s_lshl_b32 s80, s80, 8""")
        first_wait = True
        for i in pro:
            if OPT['stamp'] == 3 and getattr(i, 'stamp_before', False):
                stamp_hold(L)
            L.append(("" if i.kind == 'label' else "    ") + i.text())
            if first_wait and i.text() == "s_waitcnt lgkmcnt(0)":
                first_wait = False
                L.append("    s_mov_b32 s84, s72\n    s_mov_b32 s85, s74")
                HELD.append(84)
                stamp_hold(L)
            elif i.kind == 'barrier' or i.text().startswith("L_fold_d") or getattr(i, 'stampme', False):
                stamp_hold(L)
    else:
        em(pro)
    em(first)
    L.append(f"    s_sub_u32 {sCNT}, {sNWIN}, 1")
    L.append(f"    s_mov_b32 s60, {ENT}")
    L.append(f"    s_mov_b32 s61, {ENT}")
    L.append("    s_waitcnt vmcnt(0) lgkmcnt(0)")
    L.append("    s_barrier")
    stamp_flush(L)
    L.append("    s_nop 7")
    L.append(".p2align 6")
    if OPT['stamp'] >= 2:
        stamp(L)
    L.append("L_loop:")
    if OPT['stamp'] < 2:
        stamp(L)
    em(loop)
    stamp(L)
    em(e0)
    stamp(L)
    em(e1)
    stamp(L)
    if OPT['stamp']:
        L.append("    s_waitcnt vmcnt(0)")
    stamp(L)
    L.append("L_end:")
    L.append("    s_endpgm")
    if OPT['claim']:
        c = k.clm[0].text()
        L.append(f"""; ---- twelfth window: wave 0 asks after iteration 7, everybody learns the answer after iteration 8 ----
L_claim:
    s_cmp_eq_u32 {sIT}, 9
    s_cbranch_scc1 L_claim_answer
    s_cmp_lg_u32 {sWAVE}, 0
    s_cbranch_scc1 L_claim_back
    s_load_dwordx2 s[12:13], s[0:1], 48
    s_sub_u32 {sT0}, {sEXT}, {11 * NWG}
    s_and_b32 {sT1}, {sT0}, 31
    s_lshl_b32 {sT1}, 1, {sT1}
    s_lshr_b32 {sT0}, {sT0}, 5
    s_lshl_b32 {sT0}, {sT0}, 2
    s_mov_b32 s14, 256
    s_mov_b32 s15, 0x00020000
    v_mov_b32 {c}, {sT1}
    s_mov_b64 exec, 1
    s_waitcnt lgkmcnt(0)
    buffer_atomic_or {c}, off, s[12:15], {sT0} sc0
    s_mov_b64 exec, -1
L_claim_back:
    s_barrier
    s_branch L_loop
L_claim_answer:
    s_cmp_lg_u32 {sWAVE}, 0
    s_cbranch_scc1 L_claim_read
    s_mov_b32 m0, {L_CLAIM}
    s_mov_b64 exec, 1
    s_nop 0
    ds_write_addtid_b32 {c}
    s_mov_b64 exec, -1
    s_waitcnt lgkmcnt(0)
L_claim_read:
    s_barrier
    v_mov_b32 {c}, {L_CLAIM}
    ds_read_b32 {c}, {c}
    s_sub_u32 {sT0}, {sEXT}, {11 * NWG}
    s_and_b32 {sT0}, {sT0}, 31
    s_waitcnt lgkmcnt(0)
    v_readfirstlane_b32 {sT1}, {c}
    s_nop 3
    s_lshr_b32 {sT1}, {sT1}, {sT0}
    s_and_b32 {sT1}, {sT1}, 1
    s_cbranch_scc1 L_loop
    s_mov_b32 s6, {NBYTES}
    s_add_u32 {sCNT}, {sCNT}, 1
    s_branch L_loop""")
    L.append(f""".section .rodata,"a"
.p2align 6
.amdhsa_kernel {NAME}_kernel
  .amdhsa_next_free_vgpr 512
  .amdhsa_next_free_sgpr 102
  .amdhsa_accum_offset 256
  .amdhsa_group_segment_fixed_size 0
  .amdhsa_kernarg_size 64
  .amdhsa_user_sgpr_count 2
  .amdhsa_user_sgpr_kernarg_segment_ptr 1
  .amdhsa_system_sgpr_workgroup_id_x 1
.end_amdhsa_kernel""")
    text = "\n".join(L) + "\n"
    if OPT['align']:
        text = align8(text)
    open(path, "w").write(text)


if __name__ == "__main__":
    for a in sys.argv[2:]:
        kk, vv = a.split("=")
        OPT[kk] = type(OPT[kk])(int(vv))
    main(sys.argv[1] if len(sys.argv) > 1 else f"cdna_kernels/{NAME}.s")
```
